```python
import torch

def _softmax(x, axis=-1):
    return torch.softmax(x, dim=axis)
def _gelu(x):
    return torch.nn.functional.gelu(x, approximate="tanh")
def _silu(x):
    return torch.nn.functional.silu(x)
def _sigmoid(x):
    return torch.sigmoid(x)
def _layernorm(x, axis=-1, eps=1e-5):
    m = x.mean(dim=axis, keepdim=True)
    v = x.var(dim=axis, keepdim=True, unbiased=False)
    return (x - m) / torch.sqrt(v + eps)
def _scatter_add(tgt, idx, src, axis=0):
    return tgt.clone().index_add_(axis, idx, src)
def _segment_sum(src, seg, n):
    out = torch.zeros((n,) + src.shape[1:], dtype=src.dtype)
    return out.index_add_(0, seg, src)
def _pad(x, pw):
    flat = tuple(v for pair in reversed(pw) for v in pair)
    return torch.nn.functional.pad(x, flat)

kernel_name = 'standalone__glu_gated_geglu__prompt'

def setup_inputs():

    _w = (lambda a: (lambda t: t.to(torch.bfloat16) if t.is_floating_point() else t)(torch.as_tensor(a)))
    B, S, Dm, Df = 1, 2048, 512, 1792
    return {
        "x": _w((lambda *s: torch.randn(*s, dtype=torch.bfloat16) * 0.05)(B, S, Dm)),
        "w_gate": _w((lambda *s: torch.randn(*s, dtype=torch.bfloat16) * 0.05)(Dm, Df) * (Dm ** -0.5)),
        "w_up": _w((lambda *s: torch.randn(*s, dtype=torch.bfloat16) * 0.05)(Dm, Df) * (Dm ** -0.5)),
        "w_down": _w((lambda *s: torch.randn(*s, dtype=torch.bfloat16) * 0.05)(Df, Dm) * (Df ** -0.5)),
    }

def reference(x, w_gate, w_up, w_down):
    g = torch.einsum("bsd,df->bsf", x, w_gate)
    u = torch.einsum("bsd,df->bsf", x, w_up)
    h = _gelu(g) * u
    return torch.einsum("bsf,fd->bsd", h, w_down)
```

```python
import math, struct, sys

KNAME = "standalone__glu_gated_geglu__prompt_kernel"

DEFAULTS = dict(
    la=6,
    wd_per_int=4,
    hdepth=8,
    gelu_rate=4.0,
    flag_delay=36,
    rot1_r=4, rot1_c=4,
    rot2_q=3, rot2_n=2,
    pf_code=1, pf_x=1, pf_wd=1,
    xflag="", wflag="", wdflag="",
    diag=0, spin=1 << 16,
)

X_RING, W_RING, PART, PRIV = 0, 49152, 16384, 98304
FLAG_BASE = 0x800000
DIAG_BASE = 0x1000000
WS_BYTES = 0x10000000

def f32(x):
    return "0x%08x" % struct.unpack("<I", struct.pack("<f", x))[0]

C1 = -2.0 * math.log2(math.e) * math.sqrt(2.0 / math.pi)
C2 = C1 * 0.044715

S_WAVE, S_XCD, S_LOC = 3, 48, 49
S_RB, S_FC, S_C, S_R = 50, 51, 52, 53
S_Q, S_NT = 54, 55
S_T0, S_T1, S_T2, S_T3 = 56, 57, 58, 59
S_W4 = 60
S_SPIN = 61
SRD_X, SRD_G, SRD_U, SRD_WD, SRD_WS, SRD_OUT, SRD_DBG = 20, 24, 28, 32, 36, 40, 44
S_STAMP = 86

def srd(n):
    return f"s[{n}:{n+3}]"

class Stream:
    def __init__(self, diag):
        self.L, self.vm, self.lg = [], [], []
        self.diag, self.nstamp = diag, 0
    def op(self, s):
        self.L.append(s)
    def vmop(self, s, tag):
        self.L.append(s); self.vm.append(tag)
    def lgop(self, s, tag):
        self.L.append(s); self.lg.append(tag)
    @staticmethod
    def _need(q, tags):
        idx = [i for i, t in enumerate(q) if t in tags]
        return None if not idx else len(q) - 1 - max(idx)
    def wait(self, vm=(), lg=()):
        parts = []
        n = self._need(self.vm, set(vm))
        if n is not None:
            assert n <= 63
            parts.append(f"vmcnt({n})"); self.vm = self.vm[len(self.vm) - n:]
        n = self._need(self.lg, set(lg))
        if n is not None:
            n = min(n, 15)
            parts.append(f"lgkmcnt({n})"); self.lg = self.lg[len(self.lg) - n:]
        if parts:
            self.L.append("s_waitcnt " + " ".join(parts))
    def wait_all_lg(self):
        if self.lg:
            self.L.append("s_waitcnt lgkmcnt(0)"); self.lg = []
    def wait_all_vm(self):
        if self.vm:
            self.L.append("s_waitcnt vmcnt(0)"); self.vm = []
    def stamp(self, k):
        if self.diag:
            self.L.append(f"s_memtime s[{S_STAMP+2*k}:{S_STAMP+2*k+1}]")

def spin_check(S, P, name, reload_ops, vreg):
    S.op(f"s_mov_b32 s{S_SPIN}, {P['spin']}")
    S.op(f"{name}_chk:")
    S.op(f"v_cmp_eq_u32 vcc, 1, v{vreg}")
    S.op("s_nop 1")
    S.op("s_cmp_eq_u64 vcc, -1")
    S.op(f"s_cbranch_scc1 {name}_ok")
    S.op(f"s_sub_u32 s{S_SPIN}, s{S_SPIN}, 1")
    S.op(f"s_cbranch_scc1 {name}_ok")
    for o in reload_ops:
        S.op(o)
    S.op("s_waitcnt vmcnt(0)")
    S.op(f"s_branch {name}_chk")
    S.op(f"{name}_ok:")

def diag_dump(S, P):
    if not P["diag"]:
        return
    S.op("s_memrealtime s[84:85]")
    S.op("s_waitcnt lgkmcnt(0)")
    S.op(f"s_lshl_b32 s{S_T0}, s2, 3")
    S.op(f"s_add_u32 s{S_T0}, s{S_T0}, s{S_WAVE}")
    S.op(f"s_lshl_b32 s{S_T0}, s{S_T0}, 6")
    S.op(f"s_add_u32 s{S_T0}, s{S_T0}, {DIAG_BASE}")
    S.op("v_mov_b32 v1, 0")
    vals = [S_STAMP + 2 * k for k in range(8)] + [82, 84]
    for i, r in enumerate(vals):
        S.op(f"v_mov_b32 v2, s{r}")
        S.op(f"buffer_store_dword v2, v1, {srd(SRD_WS)}, s{S_T0} offen offset:{4*i}")
    S.op(f"s_getreg_b32 s{S_T1}, hwreg(HW_REG_HW_ID)")
    S.op(f"v_mov_b32 v2, s{S_T1}")
    S.op(f"buffer_store_dword v2, v1, {srd(SRD_WS)}, s{S_T0} offen offset:40")
    S.op(f"s_getreg_b32 s{S_T1}, hwreg(HW_REG_XCC_ID)")
    S.op(f"v_mov_b32 v2, s{S_T1}")
    S.op(f"buffer_store_dword v2, v1, {srd(SRD_WS)}, s{S_T0} offen offset:44")

def prologue(P):
    S = Stream(P["diag"])
    o = S.op
    o("s_cmp_ge_u32 s2, 256")
    o("s_cbranch_scc1 L_exit")
    if P["diag"]:
        o("s_memrealtime s[82:83]")
        for k in range(8):
            o(f"s_mov_b64 s[{S_STAMP+2*k}:{S_STAMP+2*k+1}], 0")
    S.stamp(0)
    o("s_load_dwordx8 s[4:11], s[0:1], 0")
    o("s_load_dwordx4 s[12:15], s[0:1], 32")
    o("s_load_dwordx2 s[16:17], s[0:1], 48")
    o("v_lshrrev_b32 v1, 6, v0")
    o("v_and_b32 v127, 63, v0")
    o(f"v_readfirstlane_b32 s{S_WAVE}, v1")
    o(f"s_and_b32 s{S_XCD}, s2, 7")
    o(f"s_lshr_b32 s{S_LOC}, s2, 3")
    o(f"s_and_b32 s{S_NT}, s{S_LOC}, 7")
    o(f"s_lshr_b32 s{S_Q}, s{S_LOC}, 3")
    o(f"s_and_b32 s{S_R}, s{S_LOC}, 3")
    o(f"s_lshr_b32 s{S_C}, s{S_LOC}, 2")
    o(f"s_sub_u32 s{S_C}, s{S_C}, 1")
    o(f"s_and_b32 s{S_RB}, s{S_XCD}, 1")
    o(f"s_lshl_b32 s{S_RB}, s{S_RB}, 2")
    o(f"s_add_u32 s{S_RB}, s{S_RB}, s{S_R}")
    o(f"s_lshr_b32 s{S_FC}, s{S_XCD}, 1")
    o(f"s_mul_i32 s{S_FC}, s{S_FC}, 7")
    o(f"s_add_u32 s{S_FC}, s{S_FC}, s{S_C}")
    o(f"s_and_b32 s{S_W4}, s{S_WAVE}, 3")
    for base, size in ((SRD_X, 2097152), (SRD_G, 1835008), (SRD_U, 1835008), (SRD_WD, 1835008),
                       (SRD_WS, WS_BYTES), (SRD_OUT, 2097152), (SRD_DBG, 256)):
        o(f"s_mov_b32 s{base+2}, {size}")
        o(f"s_mov_b32 s{base+3}, 0x20000")
    return S.L

def srd_bases():
    L = ["s_waitcnt lgkmcnt(0)"]
    for base, src in ((SRD_X, 4), (SRD_G, 6), (SRD_U, 8), (SRD_WD, 10), (SRD_OUT, 12), (SRD_DBG, 14), (SRD_WS, 16)):
        L.append(f"s_mov_b64 s[{base}:{base+1}], s[{src}:{src+1}]")
    return L

V_ACC, V_HB = 96, 112
V_LA, V_T0, V_T1, V_LANE = 124, 125, 126, 127
V_X0, V_X1, V_G, V_U = 96, 97, 98, 99
V_WD0, V_WD1, V_WR = 120, 121, 122
S_ROT1, S_XB, S_WB, S_PRIV, S_WDB, S_HB, S_FLG, S_XB1 = 62, 63, 64, 65, 66, 67, 18, 19
S_TBL = 68

def wdreg(i, dt):
    n = (i * 4 + dt) * 4
    return ("a", n) if n < 128 else ("v", n - 128)

def loader_setup(P):
    L = []
    o = L.append
    o(f"v_lshrrev_b32 v1, 3, v{V_LANE}")
    o(f"v_and_b32 v2, 7, v{V_LANE}")
    o(f"v_lshrrev_b32 v3, 4, v{V_LANE}")
    o("v_xor_b32 v4, v2, v3")
    o("v_lshlrev_b32 v5, 10, v1")
    o(f"v_lshl_add_u32 v{V_X0}, v4, 4, v5")
    o(f"v_xor_b32 v{V_X1}, 64, v{V_X0}")
    o("v_and_b32 v6, 2, v1")
    o("v_xor_b32 v6, v2, v6")
    o("v_mul_u32_u24 v7, 3584, v1")
    o(f"v_lshl_add_u32 v{V_G}, v6, 4, v7")
    o(f"v_xor_b32 v{V_U}, 64, v{V_G}")
    o(f"v_lshl_add_u32 v{V_WD0}, v6, 4, v5")
    o(f"v_xor_b32 v{V_WD1}, 64, v{V_WD0}")
    o(f"s_mul_i32 s{S_T0}, s{S_R}, {P['rot1_r']}")
    o(f"s_mul_i32 s{S_T1}, s{S_C}, {P['rot1_c']}")
    o(f"s_add_u32 s{S_ROT1}, s{S_T0}, s{S_T1}")
    o(f"s_lshl_b32 s{S_XB}, s{S_RB}, 18")
    o(f"s_and_b32 s{S_T0}, s{S_W4}, 1")
    o(f"s_lshl_b32 s{S_T0}, s{S_T0}, 15")
    o(f"s_add_u32 s{S_XB1}, s{S_XB}, s{S_T0}")
    o(f"s_lshl_b32 s{S_T0}, s{S_W4}, 15")
    o(f"s_add_u32 s{S_XB}, s{S_XB}, s{S_T0}")
    o(f"s_mul_i32 s{S_WB}, s{S_W4}, {16*3584}")
    o(f"s_lshl_b32 s{S_T0}, s{S_FC}, 7")
    o(f"s_add_u32 s{S_WB}, s{S_WB}, s{S_T0}")
    return L

def loader_setup2(P):
    L = []
    o = L.append
    o(f"s_lshl_b32 s{S_PRIV}, s{S_W4}, 14")
    o(f"s_add_u32 s{S_PRIV}, s{S_PRIV}, {PRIV}")
    o(f"s_mul_i32 s{S_WDB}, s{S_W4}, {14*32*1024}")
    o(f"s_lshl_b32 s{S_T0}, s{S_NT}, 7")
    o(f"s_add_u32 s{S_WDB}, s{S_WDB}, s{S_T0}")
    o(f"s_mul_i32 s{S_HB}, s{S_XCD}, {16*56*1024}")
    o(f"s_mul_i32 s{S_T0}, s{S_W4}, {14*1024}")
    o(f"s_add_u32 s{S_HB}, s{S_HB}, s{S_T0}")
    o(f"s_lshl_b32 s{S_FLG}, s{S_XCD}, 2")
    o(f"s_add_u32 s{S_FLG}, s{S_FLG}, s{S_W4}")
    o(f"s_mul_i32 s{S_T0}, s{S_Q}, {P['rot2_q']}")
    o(f"s_mul_i32 s{S_T1}, s{S_NT}, {P['rot2_n']}")
    o(f"s_add_u32 s{S_T0}, s{S_T0}, s{S_T1}")
    mx = 3 * P["rot2_q"] + 7 * P["rot2_n"]
    while mx >= 14:
        o(f"s_sub_u32 s{S_T1}, s{S_T0}, 14")
        o(f"s_cselect_b32 s{S_T0}, s{S_T0}, s{S_T1}")
        mx -= 14
    o(f"s_lshl_b32 s{S_TBL}, s{S_T0}, 10")
    for i in range(1, 14):
        o(f"s_add_u32 s{S_T0}, s{S_TBL+i-1}, 1024")
        o(f"s_cmp_eq_u32 s{S_T0}, {14*1024}")
        o(f"s_cselect_b32 s{S_TBL+i}, 0, s{S_T0}")
    o(f"v_lshlrev_b32 v{V_LA}, 4, v{V_LANE}")
    o(f"v_lshrrev_b32 v1, 4, v{V_LANE}")
    o(f"v_bfe_u32 v2, v{V_LANE}, 2, 2")
    o(f"v_bfe_u32 v3, v{V_LANE}, 1, 1")
    o(f"v_and_b32 v4, 1, v{V_LANE}")
    o("v_and_b32 v5, 2, v2")
    o("v_and_b32 v6, 1, v1")
    o("v_lshl_or_b32 v5, v6, 2, v5")
    o("v_or_b32 v5, v5, v3")
    o("v_lshl_add_u32 v6, v1, 3, v2")
    o("v_lshlrev_b32 v6, 7, v6")
    o("v_lshl_add_u32 v6, v5, 4, v6")
    o("v_lshl_add_u32 v6, v4, 3, v6")
    o(f"v_add_u32 v{V_WR}, s{S_PRIV}, v6")
    return L

def dma(S, voff, srdn, soff_ops, m0_ops, tag, flag=""):
    for x in soff_ops + m0_ops:
        S.op(x)
    S.op("s_nop 0")
    fl = (flag + " ") if flag else ""
    S.vmop(f"buffer_load_dwordx4 v{voff}, {srd(srdn)}, s{S_T2} offen {fl}lds", tag)

def slice_dmas(P, s):
    out = []
    slot = s % 3
    if s < 8:
        def pre(S, s=s):
            S.op(f"s_add_u32 s{S_T0}, s{S_ROT1}, {s}")
            S.op(f"s_and_b32 s{S_T0}, s{S_T0}, 7")
            S.op(f"s_mul_i32 s{S_T1}, s{S_T0}, {64*3584}")
            S.op(f"s_add_u32 s{S_T1}, s{S_T1}, s{S_WB}")
            S.op(f"s_lshl_b32 s{S_T0}, s{S_T0}, 7")
            S.op(f"s_add_u32 s{S_T0}, s{S_T0}, s{S_XB}")
            S.op(f"s_lshl_b32 s{S_T3}, s{S_W4}, 12")
        first = True
        order = [("g", 0), ("u", 0), ("x", 0), ("x", 1), ("g", 1), ("u", 1), ("x", 2), ("x", 3)]
        for kind, i in order:
            def em(S, kind=kind, i=i, first=first):
                if first:
                    pre(S)
                if kind == "x":
                    dma(S, V_X1 if i & 1 else V_X0, SRD_X, [f"s_add_u32 s{S_T2}, s{S_T0}, {i*8192}"],
                        [f"s_add_u32 m0, s{S_T3}, {X_RING + slot*16384 + i*1024}"], ("sl", s), P["xflag"])
                else:
                    m = 0 if kind == "g" else 1
                    dma(S, V_U if m else V_G, SRD_U if m else SRD_G, [f"s_add_u32 s{S_T2}, s{S_T1}, {i*8*3584}"],
                        [f"s_add_u32 m0, s{S_T3}, {W_RING + slot*16384 + m*2048 + i*1024}"], ("sl", s), P["wflag"])
            out.append(em); first = False
    else:
        p, sub = (s - 8) >> 2, (s - 8) & 3
        for i in range(4):
            def em(S, i=i):
                S.op(f"s_lshr_b32 s{S_T0}, s{S_W4}, 1")
                S.op(f"s_add_u32 s{S_T0}, s{S_T0}, s{S_ROT1}")
                S.op(f"s_add_u32 s{S_T0}, s{S_T0}, {2*sub}")
                S.op(f"s_and_b32 s{S_T0}, s{S_T0}, 7")
                S.op(f"s_lshl_b32 s{S_T0}, s{S_T0}, 7")
                S.op(f"s_add_u32 s{S_T0}, s{S_T0}, s{S_XB1}")
                S.op(f"s_lshl_b32 s{S_T3}, s{S_W4}, 12")
                dma(S, V_X1 if i & 1 else V_X0, SRD_X, [f"s_add_u32 s{S_T2}, s{S_T0}, {(128 + 64*p + 8*i)*1024}"],
                    [f"s_add_u32 m0, s{S_T3}, {X_RING + slot*16384 + i*1024}"], ("sl", s), P["xflag"])
            out.append(em)
    return out

class WdState:
    def __init__(self):
        self.issued = 0
        self.moved = 0

def wd_dma(S, P, W):
    i, pc = divmod(W.issued, 4)
    if pc == 0 and i >= 4:
        while W.moved <= i - 4:
            wd_move(S, W)
        S.wait(lg=[("wdr", i - 4)])
    dma(S, V_WD1 if pc & 1 else V_WD0, SRD_WD,
        [f"s_lshl_b32 s{S_T2}, s{S_TBL+i}, 5", f"s_add_u32 s{S_T2}, s{S_T2}, s{S_WDB}"] +
        ([f"s_add_u32 s{S_T2}, s{S_T2}, {pc*8192}"] if pc else []),
        [f"s_add_u32 m0, s{S_PRIV}, {(i % 4)*4096 + pc*1024}"], ("wd", i), P["wdflag"])
    W.issued += 1

def wd_move(S, W):
    i = W.moved
    S.wait(vm=[("wd", i)])
    for dt in range(4):
        addr = V_WR
        if dt:
            addr = V_T0 if dt & 1 else V_T1
            S.op(f"v_xor_b32 v{addr}, {dt*32}, v{V_WR}")
        k, n = wdreg(i, dt)
        for m in range(2):
            S.lgop(f"ds_read_b64_tr_b16 {k}[{n+2*m}:{n+2*m+1}], v{addr} offset:{(i % 4)*4096 + m*512}", ("wdr", i))
    W.moved += 1

def wd_move_ready(S, W, lag):
    while W.moved < W.issued // 4:
        n = Stream._need(S.vm, {("wd", W.moved)})
        if n is not None and n < lag:
            break
        wd_move(S, W)

def loader_phase1(P, S, W, busy):
    seq = []
    for s in range(16):
        d = slice_dmas(P, s)
        if s >= 8:
            k = P["wd_per_int"]
            seq += [("sl", s, e) for e in d] + [("wd", s, None)] * k
        else:
            seq += [("sl", s, e) for e in d]
    last = {}
    for idx, (kind, s, _) in enumerate(seq):
        if kind == "sl":
            last[s] = idx
    first = {}
    for idx, (kind, s, _) in enumerate(seq):
        if kind == "sl":
            first.setdefault(s, idx)
    bar_at = {}
    for s in range(16):
        pos = last[s] + P["la"]
        if s + 2 in first:
            pos = min(pos, first[s + 2] - 1)
        bar_at.setdefault(min(pos, len(seq) - 1), []).append(s)
    for idx, (kind, s, e) in enumerate(seq):
        if kind == "sl":
            if busy:
                e(S)
        else:
            if W.issued < 56:
                wd_dma(S, P, W)
        if busy and idx == 7:
            for x in loader_setup2(P):
                S.op(x)
        if busy:
            for b in bar_at.get(idx, []):
                S.wait(vm=[("sl", b)])
                S.op("s_barrier")
                if b in (0, 8, 15):
                    S.stamp({0: 1, 8: 2, 15: 3}[b])
            wd_move_ready(S, W, P["la"])

def poll_load(st):
    return [f"v_lshrrev_b32 v{V_T0}, 2, v{V_LANE}",
            f"v_min_u32 v{V_T0}, 6, v{V_T0}",
            f"v_and_b32 v{V_T1}, 3, v{V_LANE}",
            f"v_lshlrev_b32 v{V_T1}, 2, v{V_T1}",
            f"v_lshl_add_u32 v{V_T0}, v{V_T0}, 7, v{V_T1}",
            f"s_lshl_b32 s{S_T2}, s{S_FLG}, 12",
            f"s_add_u32 s{S_T2}, s{S_T2}, {FLAG_BASE + st*1024}",
            f"buffer_load_dword v{V_T0}, v{V_T0}, {srd(SRD_WS)}, s{S_T2} offen sc1"]

def loader_phase2(P, S, W):
    o = S.op
    ready = [f"v_mov_b32 v{V_T0}, 0", f"s_lshl_b32 s{S_T2}, s{S_FLG}, 2",
             f"buffer_load_dword v{V_T0}, v{V_T0}, {srd(SRD_DBG)}, s{S_T2} offen sc1"]
    while W.issued < 56:
        wd_dma(S, P, W)
        wd_move_ready(S, W, P["la"])
    while W.moved < 14:
        wd_move(S, W)
    S.wait_all_lg()
    for x in ready: o(x)
    o("s_waitcnt vmcnt(0)"); S.vm = []
    spin_check(S, P, "L_rdy", ready, V_T0)
    o(f"v_add_u32 v{V_WR}, s{S_PRIV}, v{V_LA}")
    o(f"v_mov_b32 v{V_T1}, v{V_WR}")
    S.stamp(4)
    tsoff = {0: (1, 0), 1: (1, 1), 2: (0, 8), 3: (0, 12)}
    stage_of = {0: 0, 1: 0, 2: 1, 3: 2}
    D = P["hdepth"]
    NH = 56
    polled = set()
    def h_dma(n):
        sub, i = divmod(n, 14)
        st = stage_of[sub]
        if st not in polled:
            polled.add(st)
            for x in poll_load(st): o(x)
            o("s_waitcnt vmcnt(0)"); S.vm = []
            spin_check(S, P, f"L_st{st}", poll_load(st), V_T0)
            S.stamp(5 + min(st, 1) if st < 2 else 7)
        sh, add = tsoff[sub]
        if n >= 16:
            S.wait(lg=[("hr", n - 16)])
        dma(S, V_LA, SRD_WS,
            [f"s_lshl_b32 s{S_T2}, s{S_Q}, {sh}", f"s_add_u32 s{S_T2}, s{S_T2}, {add}",
             f"s_mul_i32 s{S_T2}, s{S_T2}, {56*1024}", f"s_add_u32 s{S_T2}, s{S_T2}, s{S_HB}",
             f"s_add_u32 s{S_T2}, s{S_T2}, s{S_TBL+i}"],
            [f"s_add_u32 m0, s{S_PRIV}, {(n % 16)*1024}"], ("h", n), "sc1")
    V_HA = V_LANE - 0
    def h_read(n):
        S.wait(vm=[("h", n)])
        b = V_HB + 4 * (n % 2)
        S.lgop(f"ds_read_b128 v[{b}:{b+3}], v{V_WR} offset:{(n % 16)*1024}", ("hr", n))
    issued = 0
    while issued < min(D, NH):
        h_dma(issued); issued += 1
    h_read(0)
    for n in range(NH):
        sub, i = divmod(n, 14)
        if issued < NH:
            h_dma(issued); issued += 1
        if n + 1 < NH:
            h_read(n + 1)
        S.wait(lg=[("hr", n)] + ([("pw", sub - 1)] if i == 0 else []))
        b = V_HB + 4 * (n % 2)
        for dt in range(4):
            k, r = wdreg(i, dt)
            c = V_ACC + 4 * dt
            src = "0" if i == 0 else f"v[{c}:{c+3}]"
            o(f"v_mfma_f32_16x16x32_bf16 v[{c}:{c+3}], {k}[{r}:{r+3}], v[{b}:{b+3}], {src}")
        if i == 13:
            o(f"v_and_b32 v{V_T0}, 15, v{V_LANE}")
            o(f"v_lshrrev_b32 v{V_T1}, 4, v{V_LANE}")
            o(f"v_xor_b32 v{V_T1}, v{V_T1}, v{V_T0}")
            o(f"v_lshlrev_b32 v{V_T1}, 4, v{V_T1}")
            o(f"v_lshl_add_u32 v{V_T0}, v{V_T0}, 8, v{V_T1}")
            o(f"s_lshl_b32 s{S_T2}, s{S_W4}, 12")
            o(f"s_add_u32 s{S_T2}, s{S_T2}, {PART + sub*16384}")
            o(f"v_add_u32 v{V_T0}, s{S_T2}, v{V_T0}")
            for dt in range(4):
                c = V_ACC + 4 * dt
                if dt:
                    o(f"v_xor_b32 v{V_T0}, {64 * (dt ^ (dt - 1))}, v{V_T0}")
                S.lgop(f"ds_write_b128 v{V_T0}, v[{c}:{c+3}]", ("pw", sub))
            if sub == 3:
                S.wait_all_lg()
                o("s_barrier")
        if n == 3 * 14 + max(0, 14 - D - 1):
            assert issued == NH
            S.wait(lg=[("pw", 2)])
            o("s_barrier")
    diag_dump(S, P)
    o("s_endpgm")

def loader(P):
    L = ["L_loader:"] + loader_setup(P) + srd_bases()
    L += [f"s_cmp_lt_u32 s{S_LOC}, 4", "s_cbranch_scc1 L_loader_idle"]
    S = Stream(P["diag"]); W = WdState()
    loader_phase1(P, S, W, True)
    L += S.L + ["L_loader_join:"]
    S.L = []
    snap = (W.issued, W.moved)
    loader_phase2(P, S, W)
    L += S.L
    S2 = Stream(P["diag"]); W2 = WdState()
    for x in loader_setup2(P): S2.op(x)
    while W2.issued < snap[0]:
        wd_dma(S2, P, W2)
    while W2.moved < snap[1]:
        wd_move(S2, W2)
    assert (W2.issued, W2.moved) == snap
    S2.wait_all_vm(); S2.wait_all_lg()
    L += ["L_loader_idle:"] + S2.L + ["s_branch L_loader_join"]
    return L

A0, XB0, XR = 0, 64, 96
V_XA, V_WA, V_HS, V_C1, V_GT, V_FL, V_ONE, V_RD = 112, 116, 117, 118, 119, 123, 124, 125
S_HST, S_PFLG, S_C2, S_RDY = 62, 63, 64, 65
TILE_REG = {0: 0, 1: 16, 2: 32, 3: 48, 4: 64, 5: 80, 6: 0, 7: 16}

def gelu_ops(T):
    r = TILE_REG[T]
    out = []
    for p in range(4):
        a, b, ua, ub = r + 2*p, r + 2*p + 1, r + 8 + 2*p, r + 9 + 2*p
        t0, t1 = V_GT + 2 * (p & 1), V_GT + 2 * (p & 1) + 1
        out += [(f"v_mul_f32 v{t0}, v{a}, v{a}", 1), (f"v_mul_f32 v{t1}, v{b}, v{b}", 1),
                (f"v_fma_f32 v{t0}, v{t0}, s{S_C2}, v{V_C1}", 1), (f"v_fma_f32 v{t1}, v{t1}, s{S_C2}, v{V_C1}", 1),
                (f"v_mul_f32 v{t0}, v{t0}, v{a}", 1), (f"v_mul_f32 v{t1}, v{t1}, v{b}", 1),
                (f"v_exp_f32 v{t0}, v{t0}", 2), (f"v_exp_f32 v{t1}, v{t1}", 2),
                (f"v_mul_f32 v{ua}, v{a}, v{ua}", 1), (f"v_mul_f32 v{ub}, v{b}, v{ub}", 1),
                (f"v_add_f32 v{t0}, 1.0, v{t0}", 1), (f"v_add_f32 v{t1}, 1.0, v{t1}", 1),
                (f"v_rcp_f32 v{t0}, v{t0}", 2), (f"v_rcp_f32 v{t1}, v{t1}", 2),
                (f"v_mul_f32 v{ua}, v{ua}, v{t0}", 1), (f"v_mul_f32 v{ub}, v{ub}, v{t1}", 1),
                (f"v_cvt_pk_bf16_f32 v{r+p}, v{ua}, v{ub}", 1)]
    out = [(t, c, "valu") for t, c in out]
    out.append((f"s_add_u32 s{S_T2}, s{S_HST}, {2*T*56*1024}", 1, "salu"))
    out.append((f"buffer_store_dwordx4 v[{r}:{r+3}], v{V_HS}, {srd(SRD_WS)}, s{S_T2} offen sc1", 1, ("store", T)))
    return out

def p1_flag(S, P, st, tiles):
    if st == 0:
        S.wait(vm=["rdy"])
        spin_check(S, P, "L_prdy", p1_ready_ops(), V_RD)
    S.wait(vm=[("hs", t) for t in tiles])
    S.vmop(f"buffer_store_dword v{V_ONE}, v{V_FL}, {srd(SRD_WS)}, s{S_PFLG} offen offset:{st*1024} sc1", ("flag", st))

def p1_ready_ops():
    return [f"v_mov_b32 v{V_RD}, 0", f"buffer_load_dword v{V_RD}, v{V_RD}, {srd(SRD_DBG)}, s{S_RDY} offen sc1"]

def p1(P):
    S = Stream(P["diag"])
    o = S.op
    o("L_p1:")
    o("s_setprio 2")
    lane = V_LANE
    o(f"v_and_b32 v1, 31, v{lane}")
    o(f"v_lshrrev_b32 v2, 5, v{lane}")
    o("v_bfe_u32 v3, v1, 1, 3")
    o("v_xor_b32 v3, v3, v2")
    o("v_lshlrev_b32 v4, 7, v1")
    o(f"v_lshl_add_u32 v{V_XA}, v3, 4, v4")
    for ks in range(1, 4):
        o(f"v_xor_b32 v{V_XA+ks}, {ks*32}, v{V_XA}")
    o(f"v_bfe_u32 v3, v{lane}, 4, 1")
    o(f"v_bfe_u32 v4, v{lane}, 2, 2")
    o(f"v_and_b32 v5, 1, v{lane}")
    o(f"v_bfe_u32 v6, v{lane}, 1, 1")
    o("v_and_b32 v7, 2, v4")
    o("v_lshl_or_b32 v7, v3, 2, v7")
    o(f"s_lshl_b32 s{S_T0}, s{S_W4}, 1")
    o(f"v_or_b32 v5, s{S_T0}, v5")
    o("v_xor_b32 v5, v5, v7")
    o("v_lshl_add_u32 v4, v2, 3, v4")
    o("v_lshlrev_b32 v4, 7, v4")
    o("v_lshl_add_u32 v4, v3, 11, v4")
    o("v_lshl_add_u32 v4, v5, 4, v4")
    o("v_lshl_add_u32 v4, v6, 3, v4")
    o(f"v_add_u32 v{V_WA}, {W_RING}, v4")
    o("v_lshrrev_b32 v3, 4, v1")
    o(f"v_mul_u32_u24 v3, {56*1024}, v3")
    o("v_and_b32 v4, 15, v1")
    o("v_lshl_add_u32 v3, v4, 4, v3")
    o(f"v_lshl_add_u32 v{V_HS}, v2, 8, v3")
    o(f"s_mul_i32 s{S_HST}, s{S_RB}, {16*56*1024}")
    o(f"s_lshl_b32 s{S_T0}, s{S_FC}, 11")
    o(f"s_add_u32 s{S_HST}, s{S_HST}, s{S_T0}")
    o(f"s_lshl_b32 s{S_T0}, s{S_W4}, 9")
    o(f"s_add_u32 s{S_HST}, s{S_HST}, s{S_T0}")
    o(f"v_min_u32 v3, 1, v{lane}")
    o(f"v_lshlrev_b32 v{V_FL}, 28, v3")
    o(f"v_mov_b32 v{V_ONE}, 1")
    o(f"s_lshl_b32 s{S_RDY}, s{S_RB}, 2")
    o(f"s_lshr_b32 s{S_T0}, s{S_XCD}, 1")
    o(f"s_add_u32 s{S_RDY}, s{S_RDY}, s{S_T0}")
    o(f"s_lshl_b32 s{S_PFLG}, s{S_RDY}, 12")
    o(f"s_lshl_b32 s{S_RDY}, s{S_RDY}, 2")
    o(f"s_lshl_b32 s{S_T0}, s{S_C}, 7")
    o(f"s_add_u32 s{S_PFLG}, s{S_PFLG}, s{S_T0}")
    o(f"s_lshl_b32 s{S_T0}, s{S_W4}, 2")
    o(f"s_add_u32 s{S_PFLG}, s{S_PFLG}, s{S_T0}")
    o(f"s_add_u32 s{S_PFLG}, s{S_PFLG}, {FLAG_BASE}")
    o(f"v_mov_b32 v{V_C1}, {f32(C1)}")
    o(f"s_mov_b32 s{S_C2}, {f32(C2)}")
    for x in srd_bases(): o(x)
    o(f"s_cmp_lt_u32 s{S_LOC}, 4")
    o("s_cbranch_scc1 L_p1_idle")

    def w_read(n):
        s, ks = divmod(n, 4)
        for m in range(2):
            S.lgop(f"ds_read_b64_tr_b16 a[{4*n+2*m}:{4*n+2*m+1}], v{V_WA} offset:{(s%3)*16384 + ks*4096 + m*512}", ("w", n))
    def x_read0(n, T):
        s, ks = divmod(n, 4)
        b = XB0 + 16 * (n & 1) + 4 * T
        S.lgop(f"ds_read_b128 v[{b}:{b+3}], v{V_XA+ks} offset:{X_RING + (s%3)*16384 + T*4096}", ("x0", n, T))
    def x_read1(m):
        p, rem = divmod(m, 64)
        n, t = divmod(rem, 2)
        s = 8 + 4 * p + n // 8
        hf, ks = (n % 8) // 4, n % 4
        b = XR + 4 * (m % 4)
        S.lgop(f"ds_read_b128 v[{b}:{b+3}], v{V_XA+ks} offset:{X_RING + (s%3)*16384 + hf*8192 + t*4096}", ("x1", m))
    def barrier():
        S.wait_all_lg()
        o("s_barrier")

    o(".p2align 3")
    barrier()
    S.stamp(1)
    w_read(0)
    for T in range(4): x_read0(0, T)
    for n in range(32):
        nxt = []
        if n + 1 < 32:
            nxt = [lambda n=n: (w_read(n + 1), x_read0(n + 1, 0)), lambda n=n: (x_read0(n + 1, 1), x_read0(n + 1, 2)),
                   lambda n=n: x_read0(n + 1, 3), lambda: None]
        else:
            nxt = [lambda: (x_read1(0), x_read1(1)), lambda: x_read1(2), lambda: None, lambda: None]
        for T in range(4):
            if T in (0, 2):
                S.wait(lg=[("w", n), ("x0", n, T), ("x0", n, T + 1)])
            b = XB0 + 16 * (n & 1) + 4 * T
            c = A0 + 16 * T
            src = "0" if n == 0 else f"v[{c}:{c+15}]"
            o(f"v_mfma_f32_32x32x16_bf16 v[{c}:{c+15}], a[{4*n}:{4*n+3}], v[{b}:{b+3}], {src}")
            if T == 0 and n % 4 == 3:
                barrier()
            if T == 3 and n == 16:
                for x in p1_ready_ops()[:1]: o(x)
                S.vmop(p1_ready_ops()[1], "rdy")
            nxt[T]()
    S.stamp(2)
    gq = [(T,) + g for T in range(6) for g in gelu_ops(T)]
    avail = {0: 2, 1: 2, 2: 2, 3: 3, 4: 67, 5: 67}
    budget = 0.0
    stored = {}
    flagged = set()
    stage_tiles = {0: (0, 1, 2, 3), 1: (4, 5), 2: (6, 7)}
    def emit_g(g):
        T, text, cost, kind = g
        if isinstance(kind, tuple):
            S.vmop(text, ("hs", T))
        else:
            o(text)
    for m in range(128):
        p, rem = divmod(m, 64)
        n, t = divmod(rem, 2)
        T = 4 + 2 * p + t
        if m in (64, 65):
            assert (m - 64) in stored, "tile registers still live"
        S.wait(lg=[("x1", m)] + ([("x1", m + 1)] if m % 2 == 0 else []))
        b = XR + 4 * (m % 4)
        c = TILE_REG[T]
        src = "0" if n == 0 else f"v[{c}:{c+15}]"
        o(f"v_mfma_f32_32x32x16_bf16 v[{c}:{c+15}], a[{4*n}:{4*n+3}], v[{b}:{b+3}], {src}")
        if m + 3 < 128:
            if (m + 3) % 16 == 0:
                barrier()
            x_read1(m + 3)
        budget = min(budget + P["gelu_rate"], P["gelu_rate"] + 1)
        while gq and budget >= 1 and m >= avail[gq[0][0]]:
            g = gq.pop(0)
            emit_g(g)
            budget -= g[2]
            if isinstance(g[3], tuple):
                stored[g[0]] = m
        if 0 not in flagged and 3 in stored and m >= stored[3] + P["flag_delay"]:
            p1_flag(S, P, 0, stage_tiles[0]); flagged.add(0)
    S.stamp(3)
    rest = len(gq)
    for g in gq: emit_g(g)
    if rest < 12:
        o(f"s_nop {11 - rest}")
    if 0 not in flagged:
        p1_flag(S, P, 0, stage_tiles[0])
    for T in (6, 7):
        for g in gelu_ops(T): emit_g((T,) + g)
    S.stamp(4)
    p1_flag(S, P, 1, stage_tiles[1])
    p1_flag(S, P, 2, stage_tiles[2])
    S.stamp(5)

    o("L_p1_join:")
    o(f"v_lshrrev_b32 v1, 4, v{lane}")
    o(f"s_lshl_b32 s{S_T0}, s{S_W4}, 2")
    o(f"v_add_u32 v1, s{S_T0}, v1")
    o(f"v_and_b32 v2, 15, v{lane}")
    o("v_xor_b32 v3, v2, v1")
    o("v_lshlrev_b32 v3, 4, v3")
    o("v_lshl_add_u32 v3, v1, 8, v3")
    o(f"v_add_u32 v3, {PART}, v3")
    o("v_lshlrev_b32 v4, 10, v1")
    o("v_lshl_add_u32 v4, v2, 3, v4")
    o(f"s_lshl_b32 s{S_T0}, s{S_XCD}, 18")
    o(f"s_lshl_b32 s{S_T1}, s{S_NT}, 7")
    o(f"s_add_u32 s{S_T0}, s{S_T0}, s{S_T1}")
    tsoff = {0: (1, 0), 1: (1, 1), 2: (0, 8), 3: (0, 12)}
    def reduce(subs):
        o("s_barrier")
        for sub in subs:
            for cw in range(4):
                b = 8 + 16 * (sub % 3) + 4 * cw
                S.lgop(f"ds_read_b128 v[{b}:{b+3}], v3 offset:{sub*16384 + cw*4096}", ("pr", sub))
        for sub in subs:
            sh, add = tsoff[sub]
            b = 8 + 16 * (sub % 3)
            o(f"s_lshl_b32 s{S_T2}, s{S_Q}, {sh}")
            o(f"s_add_u32 s{S_T2}, s{S_T2}, {add}")
            o(f"s_lshl_b32 s{S_T2}, s{S_T2}, 14")
            o(f"s_add_u32 s{S_T2}, s{S_T2}, s{S_T0}")
            S.wait(lg=[("pr", sub)])
            for e in range(4): o(f"v_add_f32 v{b+e}, v{b+e}, v{b+4+e}")
            for e in range(4): o(f"v_add_f32 v{b+8+e}, v{b+8+e}, v{b+12+e}")
            for e in range(4): o(f"v_add_f32 v{b+e}, v{b+e}, v{b+8+e}")
            o(f"v_cvt_pk_bf16_f32 v{b+4}, v{b}, v{b+1}")
            o(f"v_cvt_pk_bf16_f32 v{b+5}, v{b+2}, v{b+3}")
            S.vmop(f"buffer_store_dwordx2 v[{b+4}:{b+5}], v4, {srd(SRD_OUT)}, s{S_T2} offen", ("out", sub))
    reduce([0, 1, 2])
    S.stamp(6)
    S.wait_all_vm()
    reduce([3])
    S.stamp(7)
    diag_dump(S, P)
    o("s_endpgm")

    o("L_p1_idle:")
    o(f"s_lshl_b32 s{S_T1}, s{S_XCD}, 2")
    o(f"s_add_u32 s{S_T1}, s{S_T1}, s{S_LOC}")
    o(f"s_cmp_lg_u32 s{S_W4}, 0")
    o("s_cbranch_scc1 L_idle_pf")
    for r in range(4): o(f"v_mov_b32 v{8+r}, 0")
    o(f"v_lshlrev_b32 v1, 6, v{lane}")
    o(f"s_lshl_b32 s{S_T0}, s{S_T1}, 12")
    o(f"s_add_u32 s{S_T0}, s{S_T0}, {FLAG_BASE}")
    o(f"buffer_store_dwordx4 v[8:11], v1, {srd(SRD_WS)}, s{S_T0} offen sc1")
    o("s_waitcnt vmcnt(0)")
    o(f"s_lshl_b32 s{S_T0}, s{S_T1}, 2")
    o(f"buffer_store_dword v{V_ONE}, v{V_FL}, {srd(SRD_DBG)}, s{S_T0} offen sc1")
    o("L_idle_pf:")
    o(f"v_lshlrev_b32 v1, 7, v{lane}")
    if P["pf_code"]:
        o("s_getpc_b64 s[68:69]")
        o("L_pc:")
        o(f"s_sub_u32 s68, s68, L_pc-{KNAME}")
        o("s_subb_u32 s69, s69, 0")
        o(f"s_mov_b32 s70, L_exit-{KNAME}")
        o("s_mov_b32 s71, 0x20000")
        o(f"s_lshl_b32 s{S_T0}, s{S_W4}, 13")
        o(f"buffer_load_dword v8, v1, s[68:71], s{S_T0} offen")
    if P["pf_x"]:
        o(f"s_lshl_b32 s{S_T0}, s{S_RB}, 18")
        o(f"s_lshl_b32 s{S_T2}, s{S_W4}, 13")
        o(f"s_add_u32 s{S_T0}, s{S_T0}, s{S_T2}")
        for i in range(4):
            o(f"s_add_u32 s{S_T2}, s{S_T0}, {131072 + i*32768}")
            o(f"buffer_load_dword v{9+i}, v1, {srd(SRD_X)}, s{S_T2} offen")
    if P["pf_wd"]:
        o(f"v_lshlrev_b32 v2, 10, v{lane}")
        o(f"s_mul_i32 s{S_T0}, s{S_W4}, {448*1024}")
        o(f"s_lshl_b32 s{S_T2}, s{S_NT}, 7")
        o(f"s_add_u32 s{S_T0}, s{S_T0}, s{S_T2}")
        for i in range(7):
            o(f"s_add_u32 s{S_T2}, s{S_T0}, {512 + i*65536}")
            o(f"buffer_load_dword v{13+i}, v2, {srd(SRD_WD)}, s{S_T2} offen")
    o("s_waitcnt vmcnt(0)")
    o("s_branch L_p1_join")
    return S.L

HEADER = """; GEGLU MLP: out = (gelu_tanh(x Wg) * (x Wu)) Wd, fused in one launch.
; @launch grid=(256,1,1) block=(512,1,1) lds=163840
"""

def generate(**kw):
    P = dict(DEFAULTS); P.update(kw)
    L = [HEADER.rstrip(), '.amdgcn_target "amdgcn-amd-amdhsa--gfx950"', ".text", f".globl {KNAME}",
         ".p2align 8", f".type {KNAME},@function", f"{KNAME}:"]
    L += prologue(P)
    L += [f"s_cmp_ge_u32 s{S_WAVE}, 4", "s_cbranch_scc1 L_p1"]
    L += loader(P)
    L += p1(P)
    L += ["L_exit:", "s_endpgm"]
    L += ['.section .rodata,"a"', ".p2align 6", f".amdhsa_kernel {KNAME}",
          "  .amdhsa_next_free_vgpr 256", "  .amdhsa_next_free_sgpr 102", "  .amdhsa_accum_offset 128",
          "  .amdhsa_group_segment_fixed_size 0", "  .amdhsa_kernarg_size 56", "  .amdhsa_user_sgpr_count 2",
          "  .amdhsa_user_sgpr_kernarg_segment_ptr 1", "  .amdhsa_system_sgpr_workgroup_id_x 1",
          "  .amdhsa_float_denorm_mode_32 3", ".end_amdhsa_kernel"]
    out = []
    for ln in L:
        pad = "" if (ln.endswith(":") or ln.startswith((".", ";", " "))) else "    "
        out.append(pad + ln)
    return "\n".join(out) + "\n"

if __name__ == "__main__":
    kw = {}
    path = "standalone__glu_gated_geglu__prompt.s"
    for a in sys.argv[1:]:
        if "=" in a:
            k, v = a.split("=", 1)
            kw[k] = type(DEFAULTS[k])(v)
        else:
            path = a
    open(path, "w").write(generate(**kw))
```

```python
import math, struct, sys

KNAME = "standalone__glu_gated_geglu__prompt_kernel"

DEFAULTS = dict(
    la=8,
    n0=0, n1=8, n2=20,
    wdlag=8,
    pollk=8,
    gelu_rate=5.5, gelu_rate2=4.5,
    rot1_r=4, rot1_c=4, rot1_x=2,
    rot2_q=0, rot2_n=0, rot2_x=2,
    pf_code=1, pf_x=1, pf_wd=2, pf_thr=2, pf_t3=1, pf_late=9, pf_thr2=3,
    xflag="", wflag="", wdflag="", oflag="sc1", hsflag="sc1",
    bar1=47, w64=0, pk=1, prio2=0, hbase=0x100000, cs=4352,
    diag=0, spin=1 << 16, empty=0, probe="", nomfma=0, fine=0, nostore=0, nidle=4, slp=2, hx=0,
)

SLOT, PART, PRIV = 32768, 0, 98304
def x1_base(s):
    return SLOT * (2, 0, 1, 2)[(s - 8) // 2] + 16384 * (s & 1)
DIAG_BASE = 0x1000000
WS_BYTES = 0x10000000

def f32(x):
    return "0x%08x" % struct.unpack("<I", struct.pack("<f", x))[0]

C1 = -2.0 * math.log2(math.e) * math.sqrt(2.0 / math.pi)
C2 = C1 * 0.044715

S_WAVE, S_XCD, S_LOC = 3, 48, 49
S_RB, S_FC, S_C, S_R = 50, 51, 52, 53
S_Q, S_NT = 54, 55
S_T0, S_T1, S_T2, S_T3 = 56, 57, 58, 59
S_W4 = 60
S_SPIN = 61
S_U0, S_U1 = 8, 9
SRD_X, SRD_G, SRD_U, SRD_WD, SRD_WS, SRD_OUT, SRD_DBG = 20, 24, 28, 32, 36, 40, 44
S_STAMP = 86

def srd(n):
    return f"s[{n}:{n+3}]"

class Stream:
    def __init__(self, diag):
        self.L, self.vm, self.lg, self.tail = [], [], [], []
        self.diag, self.nstamp = diag, 0
    def op(self, s):
        self.L.append(s)
    def vmop(self, s, tag):
        self.L.append(s); self.vm.append(tag)
    def lgop(self, s, tag):
        self.L.append(s); self.lg.append(tag)
    @staticmethod
    def _need(q, tags):
        idx = [i for i, t in enumerate(q) if t in tags]
        return None if not idx else len(q) - 1 - max(idx)
    def wait(self, vm=(), lg=()):
        parts = []
        n = self._need(self.vm, set(vm))
        if n is not None:
            assert n <= 63
            parts.append(f"vmcnt({n})"); self.vm = self.vm[len(self.vm) - n:]
        n = self._need(self.lg, set(lg))
        if n is not None:
            n = min(n, 15)
            parts.append(f"lgkmcnt({n})"); self.lg = self.lg[len(self.lg) - n:]
        if parts:
            self.L.append("s_waitcnt " + " ".join(parts))
    def wait_all_lg(self):
        if self.lg:
            self.L.append("s_waitcnt lgkmcnt(0)"); self.lg = []
    def wait_all_vm(self):
        if self.vm:
            self.L.append("s_waitcnt vmcnt(0)"); self.vm = []
    def stamp(self, k):
        if self.diag:
            self.L.append(f"{'s_memrealtime' if self.diag == 2 else 's_memtime'} s[{S_STAMP+2*k}:{S_STAMP+2*k+1}]")

def spin_check(S, P, name, reload_ops, vreg, want):
    S.op(f"v_cmp_ne_u32 vcc, {want}, v{vreg}")
    S.op(f"s_cbranch_vccnz {name}_retry")
    S.op(f"{name}_ok:")
    T = S.tail
    T += [f"{name}_retry:", f"s_mov_b32 s{S_SPIN}, {P['spin']}", f"{name}_loop:",
          f"s_sub_u32 s{S_SPIN}, s{S_SPIN}, 1", f"s_cbranch_scc1 {name}_ok"]
    T += reload_ops
    T += ["s_waitcnt vmcnt(0)", f"v_cmp_ne_u32 vcc, {want}, v{vreg}", f"s_cbranch_vccz {name}_ok",
          f"s_sleep {P['slp']}", f"s_branch {name}_loop"]

S_P0 = 10
S_ONE = 14

def signal_op(off):
    return [f"s_mov_b32 s{S_ONE}, 1", f"s_atomic_add s{S_ONE}, s[{SRD_WS}:{SRD_WS+1}], s{off}"]

def cons_addr_ops(P, dst):
    return [f"s_lshl2_add_u32 s{dst}, s{S_XCD}, s{S_W4}", f"s_mul_i32 s{dst}, s{dst}, {5 * P['cs']}"]

def prod_addr_ops(P, dst, tmp, late):
    L = [f"s_lshr_b32 s{tmp}, s{S_XCD}, 1", f"s_lshl2_add_u32 s{dst}, s{S_RB}, s{tmp}", f"s_mul_i32 s{dst}, s{dst}, 5"]
    if late:
        L += [f"s_add_u32 s{dst}, s{dst}, s{S_W4}", f"s_add_u32 s{dst}, s{dst}, 1"]
    return L + [f"s_mul_i32 s{dst}, s{dst}, {P['cs']}"]

def probe_spin(S, P, role):
    r, wg, a, b = P["probe"].split(",")
    if r != role:
        return
    S.op("s_memrealtime s[84:85]")
    S.op("s_waitcnt lgkmcnt(0)")
    if wg != "all":
        S.op(f"s_cmp_lg_u32 s2, {wg}")
        S.op(f"s_cbranch_scc1 L_probe_end")
    else:
        S.op(f"s_cmp_lt_u32 s2, 32")
        S.op(f"s_cbranch_scc1 L_probe_end")
    if a == "sk":
        S.op(f"s_load_dwordx8 s[68:75], s[{SRD_WS}:{SRD_WS+1}], {0xf0000 + 32 * int(b)} glc")
        S.op("s_waitcnt lgkmcnt(0)")
        for k in range(1, 8):
            S.op(f"s_sub_u32 s{68+k}, s{68+k}, s68")
        S.op(f"s_mov_b32 s{S_T0}, 0")
        S.op(f"s_mov_b32 s{S_T1}, 0")
        for k in range(1, 8):
            S.op(f"s_max_i32 s{S_T0}, s{S_T0}, s{68+k}")
            S.op(f"s_min_i32 s{S_T1}, s{S_T1}, s{68+k}")
        S.op(f"s_sub_u32 s{S_T0}, s{S_T0}, s{S_T1}")
        S.op(f"s_mul_i32 s{S_T0}, s{S_T0}, 20")
    elif a == "rt":
        S.op(f"s_sub_u32 s{S_T0}, s84, s82")
        S.op(f"s_lshl_b32 s{S_T0}, s{S_T0}, 2")
    else:
        S.op(f"s_sub_u32 s{S_T0}, s{S_STAMP+2*int(b)}, s{S_STAMP+2*int(a)}")
    S.op(f"s_min_u32 s{S_T0}, s{S_T0}, 50000")
    S.op("L_probe_loop:")
    S.op("s_memrealtime s[82:83]")
    S.op("s_waitcnt lgkmcnt(0)")
    S.op(f"s_sub_u32 s{S_T1}, s82, s84")
    S.op(f"s_cmp_lt_u32 s{S_T1}, s{S_T0}")
    S.op("s_cbranch_scc1 L_probe_loop")
    S.op("L_probe_end:")

def diag_dump(S, P, role):
    if not P["diag"]:
        return
    if P["probe"]:
        probe_spin(S, P, role)
        return
    S.op("s_memrealtime s[84:85]")
    S.op("s_waitcnt lgkmcnt(0)")
    S.op(f"s_lshl_b32 s{S_T0}, s2, 3")
    S.op(f"s_add_u32 s{S_T0}, s{S_T0}, s{S_WAVE}")
    S.op(f"s_lshl_b32 s{S_T0}, s{S_T0}, 6")
    S.op(f"s_add_u32 s{S_T0}, s{S_T0}, {DIAG_BASE}")
    S.op("v_mov_b32 v1, 0")
    vals = [S_STAMP + 2 * k for k in range(8)] + [82, 84]
    for i, r in enumerate(vals):
        S.op(f"v_mov_b32 v2, s{r}")
        S.op(f"buffer_store_dword v2, v1, {srd(SRD_WS)}, s{S_T0} offen offset:{4*i}")
    S.op(f"s_getreg_b32 s{S_T1}, hwreg(HW_REG_HW_ID)")
    S.op(f"v_mov_b32 v2, s{S_T1}")
    S.op(f"buffer_store_dword v2, v1, {srd(SRD_WS)}, s{S_T0} offen offset:40")
    S.op(f"s_getreg_b32 s{S_T1}, hwreg(HW_REG_XCC_ID)")
    S.op(f"v_mov_b32 v2, s{S_T1}")
    S.op(f"buffer_store_dword v2, v1, {srd(SRD_WS)}, s{S_T0} offen offset:44")

def prologue(P):
    S = Stream(P["diag"])
    o = S.op
    o(f"s_cmp_lt_u32 s2, {0 if P['empty'] else 256}")
    o("s_cbranch_scc0 L_exit")
    if P["diag"]:
        o("s_memrealtime s[82:83]")
    S.stamp(0)
    for base, off in ((SRD_X, 0), (SRD_G, 8), (SRD_U, 16)):
        o(f"s_load_dwordx2 s[{base}:{base+1}], s[0:1], {off}")
    o("v_lshrrev_b32 v1, 6, v0")
    o(f"v_and_b32 v{V_LANE}, 63, v0")
    o(f"v_readfirstlane_b32 s{S_WAVE}, v1")
    o(f"s_and_b32 s{S_XCD}, s2, 7")
    o(f"s_lshr_b32 s{S_LOC}, s2, 3")
    o(f"s_and_b32 s{S_R}, s{S_LOC}, 3")
    o(f"s_lshr_b32 s{S_C}, s{S_LOC}, 2")
    o(f"s_sub_u32 s{S_C}, s{S_C}, 1")
    o(f"s_and_b32 s{S_RB}, s{S_XCD}, 1")
    o(f"s_lshl2_add_u32 s{S_RB}, s{S_RB}, s{S_R}")
    o(f"s_lshr_b32 s{S_T3}, s{S_XCD}, 1")
    o(f"s_mul_i32 s{S_FC}, s{S_T3}, 7")
    o(f"s_add_u32 s{S_FC}, s{S_FC}, s{S_C}")
    o(f"s_and_b32 s{S_W4}, s{S_WAVE}, 3")
    o(f"s_mov_b32 s{SRD_X+3}, 0x20000")
    o(f"s_lshl_b32 s{SRD_X+2}, s{SRD_X+3}, 4")
    return S.L

def late_srds(P):
    L = []
    for base, off in ((SRD_WD, 24), (SRD_OUT, 32), (SRD_DBG, 40), (SRD_WS, 48)):
        L.append(f"s_load_dwordx2 s[{base}:{base+1}], s[0:1], {off}")
    for base, size in ((SRD_WD, 1835008), (SRD_WS, WS_BYTES), (SRD_OUT, 2097152), (SRD_DBG, 256)):
        L += [f"s_mov_b32 s{base+2}, {size}", f"s_mov_b32 s{base+3}, 0x20000"]
    L += [f"s_lshr_b32 s{S_NT}, s{S_LOC}, 2", f"s_and_b32 s{S_Q}, s{S_C}, 3", f"s_cmp_lt_u32 s{S_NT}, 4",
          f"s_cselect_b32 s{S_NT}, s{S_Q}, s{S_NT}", f"s_mov_b32 s{S_Q}, s{S_R}"]
    if P["diag"]:
        L += [f"s_mov_b64 s[{S_STAMP+2*k}:{S_STAMP+2*k+1}], 0" for k in range(1, 8) if P["fine"] != 50]
    return L

NREG = 10
V_WT, V_ACC, V_HB, NHB = 32, 48, 80, 10
V_HA, V_PA, V_PR, V_PW, V_WR = 120, 121, 122, 123, 124
V_LANE = 127
V_X, V_G, V_U, V_WD0, V_WD1 = 48, 52, 54, 56, 57
ORDER = [0, 1, 2, 10, 3, 4, 11, 5, 6, 7, 12, 8, 9, 13]
S_HS = 4
S_ROT1, S_XB, S_WB, S_PRIV, S_WDB, S_HB, S_FLG, S_XB1 = 62, 63, 64, 65, 66, 67, 18, 19
S_SIG = 16
S_TBL = 68

def wdreg(i, dt):
    if i >= NREG:
        return ("v", V_WT + 4 * dt)
    n = (i * 4 + dt) * 4
    return ("a", n) if n < 128 else ("v", n - 128)

S_SL, S_SLOT = 17, 7

def loader_setup(P):
    L = []
    o = L.append
    o(f"s_mov_b32 s{SRD_G+2}, 1835008")
    o(f"s_mov_b32 s{SRD_G+3}, s{SRD_X+3}")
    o(f"s_mov_b64 s[{SRD_U+2}:{SRD_U+3}], s[{SRD_G+2}:{SRD_G+3}]")
    o(f"v_lshrrev_b32 v1, 3, v{V_LANE}")
    o(f"v_and_b32 v2, 7, v{V_LANE}")
    o(f"v_lshrrev_b32 v3, 4, v{V_LANE}")
    o("v_xor_b32 v4, v2, v3")
    o("v_lshlrev_b32 v5, 10, v1")
    o(f"v_lshl_add_u32 v{V_X}, v4, 4, v5")
    o(f"s_movk_i32 s{S_T0}, {8192 - 1024}")
    o(f"v_xad_u32 v{V_X+1}, v{V_X}, 64, s{S_T0}")
    o(f"v_xad_u32 v{V_X+2}, v{V_X+1}, 64, s{S_T0}")
    o(f"v_xad_u32 v{V_X+3}, v{V_X+2}, 64, s{S_T0}")
    o("v_and_b32 v6, 2, v1")
    o("v_xor_b32 v6, v2, v6")
    o("v_mul_u32_u24 v7, 3584, v1")
    o(f"v_lshl_add_u32 v{V_G}, v6, 4, v7")
    o(f"v_add_u32 v{V_G+1}, {8*3584 - 1024}, v{V_G}")
    o(f"v_xor_b32 v{V_U}, 64, v{V_G}")
    o(f"v_xor_b32 v{V_U+1}, 64, v{V_G+1}")
    o(f"s_mul_i32 s{S_T0}, s{S_R}, {P['rot1_r']}")
    o(f"s_mul_i32 s{S_T1}, s{S_C}, {P['rot1_c']}")
    o(f"s_add_u32 s{S_ROT1}, s{S_T0}, s{S_T1}")
    o(f"s_xor_b32 s{S_T0}, s{S_T3}, s{S_XCD}")
    o(f"s_and_b32 s{S_T0}, s{S_T0}, 1")
    o(f"s_mul_i32 s{S_T0}, s{S_T0}, {P['rot1_x']}")
    o(f"s_add_u32 s{S_ROT1}, s{S_ROT1}, s{S_T0}")
    o(f"s_lshl3_add_u32 s{S_XB}, s{S_RB}, s{S_W4}")
    o(f"s_lshl_b32 s{S_XB}, s{S_XB}, 15")
    o(f"s_mul_i32 s{S_WB}, s{S_W4}, {16*28}")
    o(f"s_add_u32 s{S_WB}, s{S_WB}, s{S_FC}")
    o(f"s_lshl_b32 s{S_WB}, s{S_WB}, 7")
    o(f"s_lshl_b32 s{S_SLOT}, s{S_W4}, 12")
    o(f"s_mov_b32 s{S_SL}, 0")
    return L

def pass0_loop(P):
    L = []
    o = L.append
    la = P["la"]
    xf = (P["xflag"] + " ") if P["xflag"] else ""
    wf = (P["wflag"] + " ") if P["wflag"] else ""
    o("L_pass0:")
    o(f"s_add_u32 s{S_T0}, s{S_ROT1}, s{S_SL}")
    o(f"s_and_b32 s{S_T0}, s{S_T0}, 7")
    o(f"s_mul_i32 s{S_T1}, s{S_T0}, {64*3584}")
    o(f"s_add_u32 m0, s{S_SLOT}, 16384")
    o(f"s_add_u32 s{S_T1}, s{S_T1}, s{S_WB}")
    loads = [(f"buffer_load_dwordx4 v{V_G}, {srd(SRD_G)}, s{S_T1} offen {wf}lds", []),
             (f"buffer_load_dwordx4 v{V_G+1}, {srd(SRD_G)}, s{S_T1} offen offset:1024 {wf}lds",
              [f"s_add_u32 m0, s{S_SLOT}, {16384 + 2048}", f"s_lshl_b32 s{S_T0}, s{S_T0}, 7"]),
             (f"buffer_load_dwordx4 v{V_U}, {srd(SRD_U)}, s{S_T1} offen {wf}lds", []),
             (f"buffer_load_dwordx4 v{V_U+1}, {srd(SRD_U)}, s{S_T1} offen offset:1024 {wf}lds",
              [f"s_mov_b32 m0, s{S_SLOT}", f"s_add_u32 s{S_T0}, s{S_T0}, s{S_XB}"])]
    loads += [(f"buffer_load_dwordx4 v{V_X+i}, {srd(SRD_X)}, s{S_T0} offen offset:{i*1024} {xf}lds", []) for i in range(4)]
    for k, (ld, post) in enumerate(loads):
        o(ld)
        for x in post: o(x)
        if k + 1 == la and la < 8:
            o(f"s_cmp_eq_u32 s{S_SL}, 0")
            o("s_cbranch_scc1 L_pass0_nb")
            o(f"s_waitcnt vmcnt({la})")
            o("s_barrier")
            o("L_pass0_nb:")
    o(f"s_add_u32 s{S_SLOT}, s{S_SLOT}, {SLOT}")
    o(f"s_sub_u32 s{S_T0}, s{S_SLOT}, {3*SLOT}")
    o(f"s_cselect_b32 s{S_SLOT}, s{S_SLOT}, s{S_T0}")
    o(f"s_cmp_eq_u32 s{S_SL}, 0")
    o("s_cbranch_scc1 L_late")
    if la == 8:
        o("s_waitcnt vmcnt(8)")
        o("s_barrier")
    o("L_pass0_next:")
    o(f"s_add_u32 s{S_SL}, s{S_SL}, 1")
    o(f"s_cmp_lt_u32 s{S_SL}, 8")
    o("s_cbranch_scc1 L_pass0")
    return L

def rot2_ops(P, dst):
    L = [f"s_mul_i32 s{dst}, s{S_XCD}, {P['rot2_x']}"]
    for reg, k in ((S_Q, "rot2_q"), (S_NT, "rot2_n")):
        if P[k]:
            L += [f"s_mul_i32 s{S_T1}, s{reg}, {P[k]}", f"s_add_u32 s{dst}, s{dst}, s{S_T1}"]
    mx = 7 * P["rot2_x"] + 3 * P["rot2_q"] + 7 * P["rot2_n"]
    while mx >= 14:
        L += [f"s_sub_u32 s{S_T1}, s{dst}, 14", f"s_cselect_b32 s{dst}, s{dst}, s{S_T1}"]
        mx -= 14
    return L

def loader_setup2(P):
    L = []
    o = L.append
    o(f"v_lshl_add_u32 v{V_WD0}, v6, 4, v5")
    o(f"v_xor_b32 v{V_WD1}, 64, v{V_WD0}")
    o(f"s_and_b32 s{S_U0}, s{S_W4}, 1")
    o(f"s_lshl3_add_u32 s{S_XB1}, s{S_RB}, s{S_U0}")
    o(f"s_lshl_b32 s{S_XB1}, s{S_XB1}, 15")
    o(f"s_lshl_b32 s{S_PRIV}, s{S_W4}, 14")
    o(f"s_add_u32 s{S_PRIV}, s{S_PRIV}, {PRIV}")
    o(f"s_mul_i32 s{S_WDB}, s{S_W4}, {14*32*1024}")
    o(f"s_lshl_b32 s{S_U0}, s{S_NT}, 7")
    o(f"s_add_u32 s{S_WDB}, s{S_WDB}, s{S_U0}")
    o(f"s_mul_i32 s{S_HB}, s{S_XCD}, {16*56*1024}")
    o(f"s_mul_i32 s{S_U0}, s{S_W4}, {14*1024}")
    o(f"s_add_u32 s{S_HB}, s{S_HB}, s{S_U0}")
    o(f"s_add_u32 s{S_HB}, s{S_HB}, {P['hbase']}")
    o(f"s_mul_i32 s{S_U0}, s{S_Q}, {56*1024}")
    o(f"s_add_u32 s{S_HB}, s{S_HB}, s{S_U0}")
    o(f"s_add_u32 s{S_HB}, s{S_HB}, s{S_U0}")
    o(f"s_mov_b32 s{S_HS}, {56*1024}")
    o(f"s_sub_u32 s{S_HS+1}, {7*56*1024}, s{S_U0}")
    o(f"s_mov_b32 s{S_HS+2}, {4*56*1024}")
    for x in cons_addr_ops(P, S_FLG) + prod_addr_ops(P, S_SIG, S_U0, False): o(x)
    groups = [[x] for x in L]
    groups.append([x.replace(f"s{S_T1},", f"s{S_U1},").replace(f", s{S_T1}", f", s{S_U1}") for x in rot2_ops(P, S_U0)]
                  + [f"s_lshl_b32 s{S_TBL}, s{S_U0}, 10"])
    for i in range(1, 14):
        groups.append([f"s_add_u32 s{S_U0}, s{S_TBL+i-1}, 1024", f"s_cmp_eq_u32 s{S_U0}, {14*1024}",
                       f"s_cselect_b32 s{S_TBL+i}, 0, s{S_U0}"])
    L = []
    o = L.append
    o(f"v_lshlrev_b32 v{V_HA}, 4, v{V_LANE}")
    o(f"v_add_u32 v{V_HA}, s{S_HB}, v{V_HA}")
    o(f"v_lshrrev_b32 v1, 4, v{V_LANE}")
    o(f"v_bfe_u32 v2, v{V_LANE}, 2, 2")
    o(f"v_bfe_u32 v3, v{V_LANE}, 1, 1")
    o(f"v_and_b32 v4, 1, v{V_LANE}")
    o("v_and_b32 v5, 2, v2")
    o("v_and_b32 v6, 1, v1")
    o("v_lshl_or_b32 v5, v6, 2, v5")
    o("v_or_b32 v5, v5, v3")
    o("v_lshl_add_u32 v6, v1, 3, v2")
    o("v_lshlrev_b32 v6, 7, v6")
    o("v_lshl_add_u32 v6, v5, 4, v6")
    o("v_lshl_add_u32 v6, v4, 3, v6")
    o(f"v_add_u32 v{V_WR}, s{S_PRIV}, v6")
    o(f"v_and_b32 v2, 3, v{V_LANE}")
    o("v_add_u32 v2, 1, v2")
    o(f"v_mul_u32_u24 v{V_PA}, {P['cs']}, v2")
    o(f"v_and_b32 v2, 15, v{V_LANE}")
    o("v_xor_b32 v3, v1, v2")
    o("v_lshlrev_b32 v3, 4, v3")
    o("v_lshl_add_u32 v3, v2, 8, v3")
    o(f"s_lshl_b32 s{S_U0}, s{S_W4}, 12")
    o(f"v_add_u32 v{V_PW}, s{S_U0}, v3")
    for dt in range(1, 4):
        o(f"v_xor_b32 v{V_WR+dt}, {dt*32}, v{V_WR}")
    return groups + [[x] for x in L]

def dma(S, voff, srdn, soff_ops, m0_ops, tag, flag=""):
    for x in m0_ops + soff_ops:
        S.op(x)
    fl = (flag + " ") if flag else ""
    S.vmop(f"buffer_load_dwordx4 v{voff}, {srd(srdn)}, s{S_T2} offen {fl}lds", tag)

def slice_dmas(P, s):
    out = []
    p, sub = (s - 8) >> 2, (s - 8) & 3
    xf = (P["xflag"] + " ") if P["xflag"] else ""
    for i in range(4):
        def em(S, i=i):
            if i == 0:
                S.op(f"s_lshr_b32 s{S_T0}, s{S_W4}, 1")
                S.op(f"s_add_u32 s{S_T0}, s{S_T0}, s{S_ROT1}")
                S.op(f"s_add_u32 s{S_T0}, s{S_T0}, {2*sub}")
                S.op(f"s_and_b32 s{S_T0}, s{S_T0}, 7")
                S.op(f"s_lshl_b32 s{S_T0}, s{S_T0}, 7")
                S.op(f"s_add_u32 s{S_T0}, s{S_T0}, s{S_XB1}")
                S.op(f"s_lshl_b32 s{S_T3}, s{S_W4}, 12")
                S.op(f"s_add_u32 m0, s{S_T3}, {x1_base(s)}")
                S.op(f"s_add_u32 s{S_T0}, s{S_T0}, {(128 + 64*p)*1024}")
            S.vmop(f"buffer_load_dwordx4 v{V_X+i}, {srd(SRD_X)}, s{S_T0} offen offset:{i*1024} {xf}lds", ("sl", s))
        out.append(em)
    return out

class WdState:
    def __init__(self):
        self.issued = 0
        self.moved = 0

def wd_dma(S, P, W):
    i, pc = divmod(W.issued, 4)
    if pc == 0 and i >= 4:
        while W.moved < 4 * (i - 3):
            wd_move(S, W)
        S.wait(lg=[("wdr", i - 4)])
    dma(S, V_WD1 if pc & 1 else V_WD0, SRD_WD,
        [f"s_lshl_b32 s{S_T2}, s{S_TBL+i}, 5", f"s_add_u32 s{S_T2}, s{S_T2}, s{S_WDB}"] +
        ([f"s_add_u32 s{S_T2}, s{S_T2}, {pc*8192}"] if pc else []),
        [f"s_add_u32 m0, s{S_PRIV}, {(i % 4)*4096 + pc*1024}"], ("wd", i), P["wdflag"])
    W.issued += 1

def wd_move(S, W):
    i, dt = divmod(W.moved, 4)
    S.wait(vm=[("wd", i)])
    k, n = wdreg(i, dt)
    for m in range(2):
        S.lgop(f"ds_read_b64_tr_b16 {k}[{n+2*m}:{n+2*m+1}], v{V_WR+dt} offset:{(i % 4)*4096 + m*512}", ("wdr", i))
    W.moved += 1

def wd_move_ready(S, W, lag):
    if W.moved // 4 < min(W.issued // 4, NREG):
        n = Stream._need(S.vm, {("wd", W.moved // 4)})
        if n is None or n >= lag:
            wd_move(S, W)

def loader_pass1(P, S, W):
    S.vm = [("sl", 7)] * 8
    S.op(f"s_load_dword s{S_P0}, s[{SRD_DBG}:{SRD_DBG+1}], 0")
    plan = [((8, 9), P["n0"], 7, (7,)), ((10, 11), P["n0"], 8, (8, 9)), ((12, 13), P["n1"], 10, (10, 11, 12, 13)),
            ((14, 15), P["n2"], 14, (14, 15))]
    for k, (pair, nwd, bar, need) in enumerate(plan):
        for sl in pair:
            for e in slice_dmas(P, sl):
                e(S)
                wd_move_ready(S, W, P["wdlag"])
        for _ in range(nwd):
            wd_dma(S, P, W)
            wd_move_ready(S, W, P["wdlag"])
        S.wait(vm=[("sl", x) for x in need])
        if bar == 8:
            S.op("s_waitcnt lgkmcnt(0)"); S.lg = []
            S.op(f"v_mov_b32 v{V_PR}, s{S_P0}")
            spin_check(S, P, "L_rdy", ready_ops(V_PR), V_PR, 1)
        S.op("s_barrier")
        if bar == 14:
            S.op(f"s_cmp_lg_u32 s{S_W4}, 0")
            S.op("s_cbranch_scc1 L_nosig")
            for x in signal_op(S_SIG): S.op(x)
            S.op("L_nosig:")
        if not P["fine"] and k:
            S.stamp(k)

def ready_ops(v):
    return [f"v_mov_b32 v{v}, 0", f"buffer_load_dword v{v}, v{v}, {srd(SRD_DBG)}, 0 offen sc1"]

def poll_op(st):
    if st == 0:
        return f"buffer_load_dword v{V_PR}, off, {srd(SRD_WS)}, s{S_FLG} sc1"
    return f"buffer_load_dword v{V_PR}, v{V_PA}, {srd(SRD_WS)}, s{S_FLG} offen sc1"

def loader_phase2(P, S, W):
    o = S.op
    if P["fine"]:
        S.diag = 0
    NH = 56
    K = min(P["pollk"], 56 - W.issued)
    first_of_stage = {0: 0, 28: 1}
    while True:
        if 56 - W.issued == K:
            S.vmop(poll_op(0), ("poll", 0))
        if W.issued == 56:
            break
        wd_dma(S, P, W)
        wd_move_ready(S, W, P["wdlag"])
    S.stamp(4)
    D = NHB
    def h_load(n):
        sub, i = divmod(n, 14)
        if n in first_of_stage:
            st = first_of_stage[n]
            S.wait(vm=[("poll", st)])
            spin_check(S, P, f"L_st{st}", [poll_op(st)], V_PR, 7)
            S.stamp(5 + st)
        if n == 42:
            S.stamp(7)
        if i == 0 and sub and not P["hx"] & 1:
            o(f"v_add_u32 v{V_HA}, s{S_HS+sub-1}, v{V_HA}")
        b = V_HB + 4 * (n % NHB)
        S.vmop(f"buffer_load_dwordx4 v[{b}:{b+3}], v{V_HA}, {srd(SRD_WS)}, s{S_TBL+ORDER[i]} offen sc1", ("h", n))
        if n + 1 + P["pollk"] in first_of_stage:
            st = first_of_stage[n + 1 + P["pollk"]]
            S.vmop(poll_op(st), ("poll", st))
    def stage_reads(step, gen):
        return [(f"ds_read_b64_tr_b16 v[{V_WT+4*dt+2*m}:{V_WT+4*dt+2*m+1}], v{V_WR+dt} offset:{(step % 4)*4096 + m*512}",
                 ("wt", gen, dt)) for dt in range(4) for m in range(2)]
    assert W.moved == 4 * NREG
    for n in range(D):
        h_load(n)
    def part_writes(sub):
        acc, out = V_ACC + 16 * (sub & 1), []
        for dt in range(4):
            x = f"v_xor_b32 v{V_PW}, {64 * (dt ^ ((dt + 1) & 3))}, v{V_PW}"
            c = acc + 4 * dt
            if P["w64"] and sub < 3:
                out.append((f"ds_write_b64 v{V_PW}, v[{c}:{c+1}] offset:{sub*16384}", ("pw", sub), None))
                out.append((f"ds_write_b64 v{V_PW}, v[{c+2}:{c+3}] offset:{sub*16384+8}", ("pw", sub), x))
            else:
                out.append((f"ds_write_b128 v{V_PW}, v[{c}:{c+3}] offset:{sub*16384}", ("pw", sub), x))
        return out
    def mfma(n, dt):
        sub, i = divmod(n, 14)
        k, r = wdreg(ORDER[i], dt)
        b, c = V_HB + 4 * (n % NHB), V_ACC + 16 * (sub & 1) + 4 * dt
        src = "0" if i == 0 else f"v[{c}:{c+3}]"
        if not P["hx"] & 4:
            o(f"v_mfma_f32_16x16x32_bf16 v[{c}:{c+3}], {k}[{r}:{r+3}], v[{b}:{b+3}], {src}")
    staged_seq = [ORDER[n % 14] for n in range(NH) if ORDER[n % 14] >= NREG]
    reads, writes, gen = stage_reads(staged_seq[0], 0), [], 0
    S.wait(lg=[("wdr", i) for i in range(NREG)])
    done_subs = None
    for n in range(NH - 3):
        sub, i = divmod(n, 14)
        if P["fine"] >= 100 and n % 8 == 0:
            S.diag = P["diag"]; S.stamp(1 + n // 8); S.diag = 0
        staged = ORDER[i] >= NREG
        S.wait(vm=[("h", n)], lg=([("wt", gen, d) for d in range(3)] if staged else []) + ([("pw", sub - 2)] if i == 0 else []))
        if staged:
            assert not reads
            gen += 1
            reads = stage_reads(staged_seq[gen], gen)
        wrote = False
        for dt in range(4):
            if staged and dt == 3:
                S.wait(lg=[("wt", gen - 1, 3)])
            mfma(n, dt)
            if dt < 3 or n + D >= NH:
                if reads:
                    t, tag = reads.pop(0)
                    S.lgop(t, tag)
                elif writes and i >= 1 and (P["w64"] or not wrote or sub == 3):
                    t, tag, x = writes.pop(0)
                    S.lgop(t, tag); wrote = True
                    if x: o(x)
        if n + D < NH:
            h_load(n + D)
        if i == 13:
            assert not writes
            writes = part_writes(sub)
        if n == P["bar1"]:
            assert not writes
            S.wait(lg=[("pw", 2)])
            o("s_barrier")
    assert not writes
    writes = part_writes(3)
    for dt in range(4):
        for j, n in enumerate(range(NH - 3, NH)):
            S.wait(vm=[("h", n)], lg=[("wt", gen, dt)] if n == NH - 1 else [])
            mfma(n, dt)
            if dt and j == 2:
                o("s_nop 0")
                t, tag, x = writes.pop(0)
                S.lgop(t, tag); o(x)
            elif reads:
                t, tag = reads.pop(0)
                S.lgop(t, tag)
                if dt: o("s_nop 0")
            elif dt:
                o("s_nop 1")
    assert not reads
    o("s_nop 4")
    t, tag, x = writes.pop(0)
    S.lgop(t, tag)
    S.wait_all_lg()
    o("s_barrier")
    diag_dump(S, P, "ld")
    o("s_endpgm")

def loader(P):
    late = late_srds(P) + [x for g in loader_setup2(P) for x in g] + ["s_waitcnt lgkmcnt(0)"]
    L = ["L_loader:"] + loader_setup(P)
    L += [f"s_cmp_lt_u32 s{S_LOC}, {P['nidle']}", "s_cbranch_scc1 L_late", "s_waitcnt lgkmcnt(0)"]
    L += pass0_loop(P)
    L += ["s_branch L_pass1", "L_late:"] + late
    L += [f"s_cmp_lt_u32 s{S_LOC}, {P['nidle']}", "s_cbranch_scc1 L_loader_idle", "s_branch L_pass0_next", "L_pass1:"]
    S = Stream(P["diag"]); W = WdState()
    loader_pass1(P, S, W)
    L += S.L + ["L_loader_join:"]
    S.L = []
    snap = (W.issued, W.moved)
    loader_phase2(P, S, W)
    L += S.L + S.tail
    S2 = Stream(P["diag"]); W2 = WdState()
    S2.op("s_barrier")
    while W2.issued < snap[0]:
        wd_dma(S2, P, W2)
    while W2.moved < snap[1]:
        wd_move(S2, W2)
    assert (W2.issued, W2.moved) == snap
    S2.op("s_waitcnt vmcnt(0) lgkmcnt(0)")
    S2.stamp(3)
    L += ["L_loader_idle:"] + S2.L + ["s_branch L_loader_join"]
    return L

A0, XB0, XR = 0, 64, 96
V_XA, V_WA, V_HS, V_C1, V_GT, V_RD = 112, 120, 122, 123, 124, 9
S_HST, S_PFLG, S_C2, S_RDY = 62, 63, 64, 65
TILE_REG = {0: 0, 1: 16, 2: 32, 3: 48, 4: 64, 5: 80, 6: 0, 7: 16}

def gelu_ops(T, packed=0):
    r = TILE_REG[T]
    out = []
    for pp in range(2 if packed else 0):
        pr = lambda x: f"v[{x}:{x+1}]"
        q = [(r + 2*p, r + 8 + 2*p, V_GT + 2 * (p & 1)) for p in (2*pp, 2*pp + 1)]
        out += [(f"v_pk_mul_f32 {pr(t)}, {pr(g)}, {pr(g)}", 1) for g, u, t in q]
        out += [(f"v_pk_fma_f32 {pr(t)}, {pr(t)}, s[{S_C2}:{S_C2+1}], {pr(V_C1-1)} op_sel:[0,0,1] op_sel_hi:[1,0,1]", 1) for g, u, t in q]
        out += [(f"v_pk_mul_f32 {pr(t)}, {pr(t)}, {pr(g)}", 1) for g, u, t in q]
        out += [(f"v_exp_f32 v{t+e}, v{t+e}", 2) for g, u, t in q for e in (0, 1)]
        out += [(f"v_pk_mul_f32 {pr(u)}, {pr(g)}, {pr(u)}", 1) for g, u, t in q]
        out += [(f"v_pk_add_f32 {pr(t)}, {pr(t)}, 1.0 op_sel_hi:[1,0]", 1) for g, u, t in q]
        out += [(f"v_rcp_f32 v{t+e}, v{t+e}", 2) for g, u, t in q for e in (0, 1)]
        out += [(f"v_pk_mul_f32 {pr(u)}, {pr(u)}, {pr(t)}", 1) for g, u, t in q]
        out += [(f"v_cvt_pk_bf16_f32 v{r + 2*pp + e}, v{q[e][1]}, v{q[e][1]+1}", 1) for e in (0, 1)]
    for p in range(0 if packed else 4):
        a, b, ua, ub = r + 2*p, r + 2*p + 1, r + 8 + 2*p, r + 9 + 2*p
        t0, t1 = V_GT + 2 * (p & 1), V_GT + 2 * (p & 1) + 1
        out += [(f"v_mul_f32 v{t0}, v{a}, v{a}", 1), (f"v_mul_f32 v{t1}, v{b}, v{b}", 1),
                (f"v_fma_f32 v{t0}, v{t0}, s{S_C2}, v{V_C1}", 1), (f"v_fma_f32 v{t1}, v{t1}, s{S_C2}, v{V_C1}", 1),
                (f"v_mul_f32 v{t0}, v{t0}, v{a}", 1), (f"v_mul_f32 v{t1}, v{t1}, v{b}", 1),
                (f"v_exp_f32 v{t0}, v{t0}", 2), (f"v_exp_f32 v{t1}, v{t1}", 2),
                (f"v_mul_f32 v{ua}, v{a}, v{ua}", 1), (f"v_mul_f32 v{ub}, v{b}, v{ub}", 1),
                (f"v_add_f32 v{t0}, 1.0, v{t0}", 1), (f"v_add_f32 v{t1}, 1.0, v{t1}", 1),
                (f"v_rcp_f32 v{t0}, v{t0}", 2), (f"v_rcp_f32 v{t1}, v{t1}", 2),
                (f"v_mul_f32 v{ua}, v{ua}, v{t0}", 1), (f"v_mul_f32 v{ub}, v{ub}, v{t1}", 1),
                (f"v_cvt_pk_bf16_f32 v{r+p}, v{ua}, v{ub}", 1)]
    out = [(t, c, "valu") for t, c in out]
    out.append((f"s_add_u32 s{S_T2}, s{S_HST}, {2*T*56*1024}", 1, "salu"))
    out.append((f"buffer_store_dwordx4 v[{r}:{r+3}], v{V_HS}, {srd(SRD_WS)}, s{S_T2} offen sc1", 1, ("store", T)))
    return out

def p1_signal(S, tiles):
    S.wait(vm=[("hs", t) for t in tiles])
    for x in signal_op(S_PFLG): S.op(x)

def p1(P):
    S = Stream(P["diag"])
    o = S.op
    o("L_p1:")
    o("s_mov_b64 exec, -1")
    o("s_setprio 2")
    lane = V_LANE
    for x in late_srds(P): o(x)
    o(f"v_and_b32 v1, 31, v{lane}")
    o(f"v_lshrrev_b32 v2, 5, v{lane}")
    o("v_bfe_u32 v3, v1, 1, 3")
    o("v_xor_b32 v3, v3, v2")
    o("v_lshlrev_b32 v4, 7, v1")
    o(f"v_lshl_add_u32 v{V_XA}, v3, 4, v4")
    for ks in range(1, 4):
        o(f"v_xor_b32 v{V_XA+ks}, {ks*32}, v{V_XA}")
    for ks in range(4):
        o(f"v_add_u32 v{V_XA+4+ks}, {2*SLOT}, v{V_XA+ks}")
    o(f"v_bfe_u32 v3, v{lane}, 4, 1")
    o(f"v_bfe_u32 v4, v{lane}, 2, 2")
    o(f"v_and_b32 v5, 1, v{lane}")
    o(f"v_bfe_u32 v6, v{lane}, 1, 1")
    o("v_and_b32 v7, 2, v4")
    o("v_lshl_or_b32 v7, v3, 2, v7")
    o(f"s_lshl_b32 s{S_T0}, s{S_W4}, 1")
    o(f"v_or_b32 v5, s{S_T0}, v5")
    o("v_xor_b32 v5, v5, v7")
    o("v_lshl_add_u32 v4, v2, 3, v4")
    o("v_lshlrev_b32 v4, 7, v4")
    o("v_lshl_add_u32 v4, v3, 11, v4")
    o("v_lshl_add_u32 v4, v5, 4, v4")
    o("v_lshl_add_u32 v4, v6, 3, v4")
    o(f"v_mov_b32 v{V_WA}, v4")
    o(f"v_add_u32 v{V_WA+1}, {2*SLOT}, v4")
    o("v_lshrrev_b32 v3, 4, v1")
    o(f"v_mul_u32_u24 v3, {56*1024}, v3")
    o("v_and_b32 v4, 15, v1")
    o("v_lshl_add_u32 v3, v4, 4, v3")
    o(f"v_lshl_add_u32 v{V_HS}, v2, 8, v3")
    o(f"s_mul_i32 s{S_HST}, s{S_RB}, {16*56*1024}")
    o(f"s_lshl_b32 s{S_T0}, s{S_FC}, 11")
    o(f"s_add_u32 s{S_HST}, s{S_HST}, s{S_T0}")
    o(f"s_lshl_b32 s{S_T0}, s{S_W4}, 9")
    o(f"s_add_u32 s{S_HST}, s{S_HST}, s{S_T0}")
    o(f"s_add_u32 s{S_HST}, s{S_HST}, {P['hbase']}")
    for x in prod_addr_ops(P, S_PFLG, S_T0, True): o(x)
    o(f"v_mov_b32 v{V_C1}, {f32(C1)}")
    o(f"s_mov_b32 s{S_C2}, {f32(C2)}")
    o("s_waitcnt vmcnt(0) lgkmcnt(0)")
    if ",sk," in P["probe"]:
        o("v_mov_b32 v1, s82")
        o("v_mov_b32 v2, 0")
        o(f"s_lshl_b32 s{S_T0}, s2, 2")
        o(f"s_add_u32 s{S_T0}, s{S_T0}, 0xf0000")
        o(f"buffer_store_dword v1, v2, {srd(SRD_WS)}, s{S_T0} offen sc1")
        o("s_waitcnt vmcnt(0)")
    o(f"s_cmp_lt_u32 s{S_LOC}, {P['nidle']}")
    o("s_cbranch_scc1 L_p1_idle")

    def lds(off):
        return (1, off - 2 * SLOT) if off >= 2 * SLOT else (0, off)
    def w_read(n):
        s, ks = divmod(n, 4)
        for m in range(2):
            hi, off = lds((s % 3) * SLOT + 16384 + ks * 4096 + m * 512)
            S.lgop(f"ds_read_b64_tr_b16 a[{4*n+2*m}:{4*n+2*m+1}], v{V_WA+hi} offset:{off}", ("w", n))
    def x_read0(n, T):
        s, ks = divmod(n, 4)
        b = XB0 + 16 * (n & 1) + 4 * T
        hi, off = lds((s % 3) * SLOT + T * 4096)
        S.lgop(f"ds_read_b128 v[{b}:{b+3}], v{V_XA+4*hi+ks} offset:{off}", ("x0", n, T))
    seq1 = [(4 + t, n) for n in range(32) for t in range(2)] + [(6 + t, n) for n in range(16) for t in range(2)]
    seq1 += [(6, n) for n in range(16, 32)] + [(7, n) for n in range(16, 32)]
    def x_read1(m):
        T, n = seq1[m]
        s = 8 + 4 * ((T - 4) // 2) + n // 8
        hf, ks = (n % 8) // 4, n % 4
        b = XR + 4 * (m % 4)
        hi, off = lds(x1_base(s) + hf * 8192 + (T & 1) * 4096)
        S.lgop(f"ds_read_b128 v[{b}:{b+3}], v{V_XA+4*hi+ks} offset:{off}", ("x1", m))
    def barrier():
        S.wait_all_lg()
        o("s_barrier")

    o(".p2align 3")
    barrier()
    S.stamp(1)
    w_read(0)
    for T in range(4): x_read0(0, T)
    for n in range(32):
        nxt = []
        if n + 1 < 32:
            nxt = [lambda n=n: (w_read(n + 1), x_read0(n + 1, 0)), lambda n=n: (x_read0(n + 1, 1), x_read0(n + 1, 2)),
                   lambda n=n: x_read0(n + 1, 3), lambda: None]
        else:
            nxt = [lambda: (x_read1(0), x_read1(1)), lambda: x_read1(2), lambda: None, lambda: None]
        for T in range(4):
            if T in (0, 2):
                S.wait(lg=[("w", n), ("x0", n, T), ("x0", n, T + 1)])
            b = XB0 + 16 * (n & 1) + 4 * T
            c = A0 + 16 * T
            src = "0" if n == 0 else f"v[{c}:{c+15}]"
            o(f"v_mfma_f32_32x32x16_bf16 v[{c}:{c+15}], a[{4*n}:{4*n+3}], v[{b}:{b+3}], {src}")
            if T == 0 and n % 4 == 3:
                barrier()
                if P["fine"] == 1 and n < 24:
                    S.stamp(2 + n // 4)
            nxt[T]()
    if P["fine"] == 1:
        S.diag = 0
    S.stamp(2)
    gq = [(T,) + g for T in range(7) for g in gelu_ops(T)]
    avail = {0: 2, 1: 2, 2: 2, 3: 3, 4: 68, 5: 68, 6: 116}
    budget = 0.0
    stored = {}
    stage_tiles = {0: (0, 1, 2, 3), 1: (4, 5), 2: (6, 7)}
    def emit_g(g):
        T, text, cost, kind = g
        if isinstance(kind, tuple):
            S.vmop(text, ("hs", T))
        else:
            o(text)
    for m in range(128):
        T, n = seq1[m]
        if m in (64, 65):
            assert (m - 64) in stored, "tile registers still live"
        S.wait(lg=[("x1", m)] + ([("x1", m + 1)] if m % 2 == 0 else []))
        b = XR + 4 * (m % 4)
        c = TILE_REG[T]
        src = "0" if n == 0 else f"v[{c}:{c+15}]"
        o(f"v_mfma_f32_32x32x16_bf16 v[{c}:{c+15}], a[{4*n}:{4*n+3}], v[{b}:{b+3}], {src}")
        if m + 3 < 128 and m + 3 not in (32, 96):
            if m + 2 in (32, 96):
                if m + 2 == 96:
                    assert 3 in stored
                    S.wait(vm=[("hs", t) for t in stage_tiles[0]])
                barrier()
                x_read1(m + 2)
            x_read1(m + 3)
        rate = P["gelu_rate"] if gq and gq[0][0] < 4 else P["gelu_rate2"]
        budget = min(budget + rate, rate + 1)
        while gq and budget >= 1 and m >= avail[gq[0][0]]:
            g = gq.pop(0)
            emit_g(g)
            budget -= g[2]
            if isinstance(g[3], tuple):
                stored[g[0]] = m
    S.stamp(3)
    n0 = len(S.L)
    for g in gq: emit_g(g)
    if len(S.L) - n0 < 12:
        o(f"s_nop {11 - (len(S.L) - n0)}")
    for g in gelu_ops(7, P["pk"]): emit_g((7,) + g)
    S.stamp(4)
    p1_signal(S, (4, 5, 6, 7))
    S.stamp(5)
    o("L_p1_join:")
    if P["prio2"]:
        o("s_setprio 0")

    o(f"v_mbcnt_lo_u32_b32 v{lane}, -1, 0")
    o(f"v_mbcnt_hi_u32_b32 v{lane}, -1, v{lane}")
    o(f"v_lshrrev_b32 v1, 4, v{lane}")
    o(f"s_lshl_b32 s{S_T0}, s{S_W4}, 2")
    o(f"v_add_u32 v1, s{S_T0}, v1")
    o(f"v_and_b32 v2, 15, v{lane}")
    o("v_xor_b32 v3, v2, v1")
    o("v_lshlrev_b32 v3, 4, v3")
    o("v_lshl_add_u32 v3, v1, 8, v3")
    o("v_lshlrev_b32 v4, 10, v1")
    o("v_lshl_add_u32 v4, v2, 3, v4")
    o(f"s_lshl_b32 s{S_T0}, s{S_XCD}, 18")
    o(f"s_lshl_b32 s{S_T1}, s{S_NT}, 7")
    o(f"s_add_u32 s{S_T0}, s{S_T0}, s{S_T1}")
    tsoff = {0: (1, 0), 1: (1, 1), 2: (0, 8), 3: (0, 12)}
    def reduce(subs):
        o("s_barrier")
        for sub in subs:
            for cw in range(4):
                b = 8 + 16 * sub + 4 * cw
                S.lgop(f"ds_read_b128 v[{b}:{b+3}], v3 offset:{sub*16384 + cw*4096}", ("pr", sub))
        for sub in subs:
            sh, add = tsoff[sub]
            b = 8 + 16 * sub
            o(f"s_lshl_b32 s{S_T2}, s{S_Q}, {sh}")
            o(f"s_add_u32 s{S_T2}, s{S_T2}, {add}")
            o(f"s_lshl_b32 s{S_T2}, s{S_T2}, 14")
            o(f"s_add_u32 s{S_T2}, s{S_T2}, s{S_T0}")
            S.wait(lg=[("pr", sub)])
            for e in range(4): o(f"v_add_f32 v{b+e}, v{b+e}, v{b+4+e}")
            for e in range(4): o(f"v_add_f32 v{b+8+e}, v{b+8+e}, v{b+12+e}")
            for e in range(4): o(f"v_add_f32 v{b+e}, v{b+e}, v{b+8+e}")
            o(f"v_cvt_pk_bf16_f32 v{b+4}, v{b}, v{b+1}")
            o(f"v_cvt_pk_bf16_f32 v{b+5}, v{b+2}, v{b+3}")
            S.vmop(f"buffer_store_dwordx2 v[{b+4}:{b+5}], v4, {srd(SRD_OUT)}, s{S_T2} offen {P['oflag']}".rstrip(), ("out", sub))
    reduce([0, 1, 2])
    S.stamp(6)
    reduce([3])
    S.stamp(7)
    diag_dump(S, P, "p1")
    o("s_endpgm")

    o("L_p1_idle:")
    o(f"s_cmp_lg_u32 s{S_W4}, 0")
    o("s_cbranch_scc1 L_idle_pf")
    o(f"s_lshl_b32 s{S_T1}, s{S_XCD}, 2")
    o(f"s_add_u32 s{S_T1}, s{S_T1}, s{S_LOC}")
    o(f"s_mul_i32 s{S_T1}, s{S_T1}, {5 * P['cs']}")
    o(f"s_add_u32 s68, s{SRD_WS}, s{S_T1}")
    o(f"s_addc_u32 s69, s{SRD_WS+1}, 0")
    o(f"s_mov_b32 s{S_T0}, 0")
    for k in range(5):
        o(f"s_atomic_and s{S_T0}, s[68:69], {k * P['cs']}")
    o(f"s_mov_b32 s{S_T1}, 1")
    o("s_waitcnt lgkmcnt(0)")
    o(f"s_atomic_add s{S_T1}, s[{SRD_DBG}:{SRD_DBG+1}], 128 glc")
    o("s_waitcnt lgkmcnt(0)")
    o(f"s_cmp_lg_u32 s{S_T1}, 31")
    o("s_cbranch_scc1 L_idle_done")
    o(f"s_mov_b32 s{S_T1}, 1")
    o(f"s_atomic_add s{S_T1}, s[{SRD_DBG}:{SRD_DBG+1}], 0")
    o("s_branch L_idle_done")
    o("L_idle_pf:")
    o(f"v_lshlrev_b32 v1, 7, v{lane}")
    o(f"s_cmp_lg_u32 s{S_W4}, 1")
    o("s_cbranch_scc1 L_idle_done")
    def pf_x(qs):
        for qi in qs:
            o(f"s_lshr_b32 s{S_T0}, s{S_XCD}, 1")
            o(f"s_add_u32 s{S_T0}, s{S_T0}, {qi}")
            o(f"s_and_b32 s{S_T0}, s{S_T0}, 3")
            o(f"s_lshl_b32 s{S_T0}, s{S_T0}, 15")
            o(f"s_lshl_b32 s{S_T2}, s{S_RB}, 18")
            o(f"s_add_u32 s{S_T0}, s{S_T0}, s{S_T2}")
            for i in range(4):
                o(f"s_add_u32 s{S_T2}, s{S_T0}, {131072 + i*8192}")
                o(f"s_waitcnt vmcnt({P['pf_thr']})")
                o(f"buffer_load_dword v8, v1, {srd(SRD_X)}, s{S_T2} offen")
    def pf_wd(steps, thr):
        for i in steps:
            o(f"s_add_u32 s{S_T0}, s{S_T3}, {i}")
            o(f"s_sub_u32 s{S_T2}, s{S_T0}, 14")
            o(f"s_cselect_b32 s{S_T0}, s{S_T0}, s{S_T2}")
            o(f"s_mul_i32 s{S_T2}, s{S_LOC}, 14")
            o(f"s_add_u32 s{S_T0}, s{S_T0}, s{S_T2}")
            o(f"s_lshl_b32 s{S_T0}, s{S_T0}, 15")
            for j in range(4):
                o(f"s_add_u32 s{S_T2}, s{S_T0}, {j*8192}")
                o(f"s_waitcnt vmcnt({thr})")
                o(f"buffer_load_dword v8, v1, {srd(SRD_WD)}, s{S_T2} offen")
    for x in rot2_ops(P, S_T3): o(x)
    S.diag = P["diag"]
    S.stamp(1)
    if P["pf_x"]: pf_x([0])
    S.stamp(2)
    pf_wd(range(min(2, P["pf_wd"])), P["pf_thr"])
    S.stamp(3)
    def pf_tile(nt):
        o(f"v_lshlrev_b32 v2, 10, v{lane}")
        for i in range(2, P["pf_late"], 2):
            o(f"s_add_u32 s{S_T0}, s{S_T3}, {i}")
            o(f"s_sub_u32 s{S_T2}, s{S_T0}, 14")
            o(f"s_cselect_b32 s{S_T0}, s{S_T0}, s{S_T2}")
            o(f"s_mul_i32 s{S_T2}, s{S_LOC}, 14")
            o(f"s_add_u32 s{S_T0}, s{S_T0}, s{S_T2}")
            o(f"s_lshl_b32 s{S_T0}, s{S_T0}, 15")
            o(f"s_waitcnt vmcnt({P['pf_thr']})")
            o(f"buffer_load_dword v8, v2, {srd(SRD_WD)}, s{S_T0} offen offset:{nt*128}")
    pf_x(list(range(1, P["pf_x"])))
    pf_wd(range(P["pf_late"], 14), P["pf_thr2"])
    for nt in [3, 0, 1, 2][:P["pf_t3"]]: pf_tile(nt)
    pf_wd(range(2, P["pf_wd"]), P["pf_thr"])
    S.stamp(4)
    for x in ready_ops(V_RD): o(x)
    o("s_waitcnt vmcnt(0)")
    S.stamp(5)
    spin_check(S, P, "L_irdy", ready_ops(V_RD), V_RD, 1)
    o("L_idle_done:")
    o("s_barrier")
    o("s_branch L_p1_join")
    return S.L + S.tail

HEADER = """; GEGLU MLP: out = (gelu_tanh(x Wg) * (x Wu)) Wd, fused in one launch.
; @launch grid=(256,1,1) block=(512,1,1) lds=163840
"""

def generate(**kw):
    P = dict(DEFAULTS); P.update(kw)
    L = [HEADER.rstrip(), '.amdgcn_target "amdgcn-amd-amdhsa--gfx950"', ".text", f".globl {KNAME}",
         ".p2align 8", f".type {KNAME},@function", f"{KNAME}:"]
    L += prologue(P)
    L += [f"s_cmp_ge_u32 s{S_WAVE}, 4"]
    if P["pf_code"]:
        L += ["s_cbranch_scc0 L_loader", "s_getpc_b64 s[68:69]", "L_pc:", "s_mov_b32 s70, L_exit-L_pc",
              f"s_mov_b32 s71, s{SRD_X+3}", f"s_lshl2_add_u32 s{S_T0}, s{S_LOC}, s{S_W4}",
              f"s_lshl_b32 s{S_T0}, s{S_T0}, 8", f"v_lshlrev_b32 v1, 7, v{V_LANE}", "s_mov_b64 exec, 3",
              f"buffer_load_dword v8, v1, s[68:71], s{S_T0} offen", "s_branch L_p1"]
    else:
        L += ["s_cbranch_scc1 L_p1"]
    ll = loader(P)
    if P["hx"] & 8:
        ll = [x for x in ll if not (x.startswith("buffer_load_dword v") and f"s{S_FLG} " in x)]
    j0, j1 = ll.index("L_st0_ok:"), ll.index("L_loader_idle:")
    if P["hx"] & 16:
        ll = [x for i, x in enumerate(ll) if not (j0 < i < j1 and x.startswith("ds_write"))]
    if P["hx"] & 32:
        ll = [x for i, x in enumerate(ll) if not (j0 < i < j1 and x.startswith("ds_read"))]
    if P["hx"] & 64:
        ll = [x for i, x in enumerate(ll) if not (j0 < i < j1 and x.startswith("buffer_load_dwordx4"))]
    L += ll
    pl = p1(P)
    if P["nomfma"] & 1:
        pl = [x for x in pl if not x.startswith("v_mfma")]
    if P["nomfma"] & 2:
        j = pl.index("L_p1_join:")
        pl = [x for i, x in enumerate(pl) if i > j or not x.startswith("ds_read")]
    j = pl.index("L_p1_join:")
    if P["nostore"] & 1:
        pl = [x for i, x in enumerate(pl) if i > j or not x.startswith("buffer_store_dwordx4")]
    if P["nostore"] & 2:
        pl = [x for i, x in enumerate(pl) if i > j or not x.startswith("buffer_store_dword ")]
    if P["hsflag"] != "sc1":
        pl = [x.replace(" sc1", " " + P["hsflag"]) if i < j and x.startswith("buffer_store_dwordx4") else x for i, x in enumerate(pl)]
    if P["nostore"] & 4:
        pl = [x.replace(" sc1", "") if i < j and x.startswith("buffer_store_dwordx4") else x for i, x in enumerate(pl)]
    L += pl
    L += ["L_exit:", "s_endpgm"]
    L += ['.section .rodata,"a"', ".p2align 6", f".amdhsa_kernel {KNAME}",
          "  .amdhsa_next_free_vgpr 256", "  .amdhsa_next_free_sgpr 102", "  .amdhsa_accum_offset 128",
          "  .amdhsa_group_segment_fixed_size 0", "  .amdhsa_kernarg_size 56", "  .amdhsa_user_sgpr_count 2",
          "  .amdhsa_user_sgpr_kernarg_segment_ptr 1", "  .amdhsa_system_sgpr_workgroup_id_x 1",
          "  .amdhsa_float_denorm_mode_32 3", ".end_amdhsa_kernel"]
    out = []
    for ln in L:
        pad = "" if (ln.endswith(":") or ln.startswith((".", ";", " "))) else "    "
        out.append(pad + ln)
    return "\n".join(out) + "\n"

if __name__ == "__main__":
    kw = {}
    path = "standalone__glu_gated_geglu__prompt.s"
    for a in sys.argv[1:]:
        if "=" in a:
            k, v = a.split("=", 1)
            kw[k] = type(DEFAULTS[k])(v)
        else:
            path = a
    open(path, "w").write(generate(**kw))
```

```python
import sys, numpy as np
sys.path.insert(0, "work")

def gen(flag, nev, gap, pre, loads, kind='x4'):
    L = []
    A = L.append
    A(f"; @launch grid=(256,1,1) block=(512,1,1) lds=131072")
    A('.amdgcn_target "amdgcn-amd-amdhsa--gfx950"')
    A(".text\n.globl mb_kernel\n.p2align 8\n.type mb_kernel,@function\nmb_kernel:")
    A("s_load_dwordx4 s[4:7], s[0:1], 0")
    A("s_load_dwordx2 s[16:17], s[0:1], 16")
    A("v_lshrrev_b32 v1, 6, v0")
    A("v_and_b32 v2, 63, v0")
    A("v_readfirstlane_b32 s3, v1")
    A("v_lshlrev_b32 v3, 4, v2")
    A("s_waitcnt lgkmcnt(0)")
    A("s_mov_b32 s8, s4\ns_mov_b32 s9, s5\ns_mov_b32 s10, 0x4000000\ns_mov_b32 s11, 0x20000")
    A("s_mov_b32 s12, s6\ns_mov_b32 s13, s7\ns_mov_b32 s14, 0x4000000\ns_mov_b32 s15, 0x20000")
    A("s_mov_b32 s18, 0x100000\ns_mov_b32 s19, 0x20000")
    A("s_and_b32 s27, s3, 3")
    A("s_cmp_ge_u32 s3, 4\ns_cbranch_scc1 storer")
    A("s_lshl_b32 s22, s27, 15\ns_mov_b32 m0, s22")
    A("s_lshr_b32 s23, s2, 5\ns_lshl_b32 s23, s23, 20\ns_lshl_b32 s24, s27, 10\ns_add_u32 s23, s23, s24")
    for i in range(loads):
        if i >= 8: A("s_waitcnt vmcnt(7)")
        A("buffer_load_dwordx4 v3, s[8:11], s23 offen lds")
        A("s_add_u32 s23, s23, 4096")
    A("s_waitcnt vmcnt(0)")
    A("s_endpgm")
    A("storer:")
    A("s_setprio 2")
    A("s_lshl_b32 s25, s2, 2\ns_add_u32 s25, s25, s27\ns_lshl_b32 s25, s25, 10")
    A("s_lshr_b32 s26, s2, 3\ns_lshl_b32 s26, s26, 2\ns_add_u32 s26, s26, s27\ns_lshl_b32 s26, s26, 12\ns_and_b32 s28, s2, 7\ns_lshl_b32 s28, s28, 7\ns_add_u32 s26, s26, s28")
    A("v_lshrrev_b32 v8, 4, v2\nv_and_b32 v9, 15, v2\nv_lshlrev_b32 v8, 10, v8\nv_lshl_add_u32 v10, v9, 3, v8")
    A("v_and_b32 v9, 1, v2\nv_lshlrev_b32 v9, 30, v9\nv_or_b32 v11, v9, v10")
    A("s_lshr_b32 s29, s2, 3\ns_lshl_b32 s29, s29, 14\ns_add_u32 s29, s29, s28\ns_lshl_b32 s30, s27, 5\ns_add_u32 s29, s29, s30")
    A("v_and_b32 v8, 15, v2\nv_lshrrev_b32 v9, 4, v2\nv_lshlrev_b32 v8, 10, v8\nv_lshl_add_u32 v12, v9, 3, v8")
    for _ in range(pre): A("s_sleep 64")
    for i in range(nev):
        A(f"s_sleep {gap}")
        A(f"s_memtime s[{40+4*i}:{41+4*i}]")
        if kind == "x4":
            A(f"buffer_store_dwordx4 v[4:7], v3, s[12:15], s25 offen {flag}")
        elif kind == "x2":
            A(f"buffer_store_dwordx2 v[4:5], v10, s[12:15], s26 offen {flag}")
        elif kind == "x2q":
            A(f"buffer_store_dwordx2 v[4:5], v12, s[12:15], s29 offen {flag}")
        elif kind == "x4h":
            A(f"buffer_store_dwordx4 v[4:7], v11, s[12:15], s26 offen {flag}")
        A("s_waitcnt vmcnt(0)")
        A(f"s_memtime s[{42+4*i}:{43+4*i}]")
        A("s_add_u32 s25, s25, 0x100000")
        A("s_add_u32 s26, s26, 0x100000")
        A("s_add_u32 s29, s29, 0x100000")
    A("s_waitcnt lgkmcnt(0)")
    A("s_lshl_b32 s21, s2, 2\ns_add_u32 s21, s21, s27\ns_lshl_b32 s21, s21, 6")
    A("v_mov_b32 v5, 0")
    for i in range(nev):
        A(f"s_sub_u32 s30, s{42+4*i}, s{40+4*i}")
        A("v_mov_b32 v6, s30")
        A(f"buffer_store_dword v6, v5, s[16:19], s21 offen offset:{4*i}")
    A("s_waitcnt vmcnt(0)")
    A("s_endpgm")
    A('.section .rodata,"a"\n.p2align 6\n.amdhsa_kernel mb_kernel')
    A(" .amdhsa_next_free_vgpr 128\n .amdhsa_next_free_sgpr 102\n .amdhsa_accum_offset 128")
    A(" .amdhsa_group_segment_fixed_size 0\n .amdhsa_kernarg_size 24\n .amdhsa_user_sgpr_count 2")
    A(" .amdhsa_user_sgpr_kernarg_segment_ptr 1\n .amdhsa_system_sgpr_workgroup_id_x 1\n.end_amdhsa_kernel")
    return "\n".join(L) + "\n"

if __name__ == "__main__":
    if len(sys.argv) > 1:
        open("t.s", "w").write(gen("sc1", 14, 2, 2, 64))
        sys.exit(0)
    from hostlib import *
    hot = DeviceBuffer(64 << 20); cold = DeviceBuffer(64 << 20); out = DeviceBuffer(1 << 20)
    sweep = ReadSweep(); evict = CodeEvictor()
    for flag, nev, gap, pre, loads, kind in [(f, 8, 0, 1, 0, k) for f in ("sc1",) for k in ("x2", "x2q", "x2", "x2q")]:
        co = assemble(gen(flag, nev, gap, pre, loads, kind), "mb_kernel", 3, "mb14")
        k = AsmKernel(co, "mb_kernel")
        print(f"flag={flag} gap={gap} pre={pre} kind={kind}")
        for r in range(3):
            memset(cold, 0x5A); evict()
            sweep.k.launch((2048,1,1), (256,1,1), kernarg([sweep.buf.ptr]), 0)
            k.launch((256,1,1), (512,1,1), kernarg([hot.ptr, cold.ptr, out.ptr]), 131072)
            sync()
            o = out.to_numpy(np.uint32, (1024, 16))[:, :nev].astype(float)
            print("   ", " ".join(f"{v:5.0f}" for v in o.mean(axis=0)))
        k.unload()
```
